```python
import torch

def _softmax(x, axis=-1):
    return torch.softmax(x, dim=axis)
def _gelu(x):
    return torch.nn.functional.gelu(x, approximate="tanh")
def _silu(x):
    return torch.nn.functional.silu(x)
def _sigmoid(x):
    return torch.sigmoid(x)
def _layernorm(x, axis=-1, eps=1e-5):
    m = x.mean(dim=axis, keepdim=True)
    v = x.var(dim=axis, keepdim=True, unbiased=False)
    return (x - m) / torch.sqrt(v + eps)
def _scatter_add(tgt, idx, src, axis=0):
    return tgt.clone().index_add_(axis, idx, src)
def _segment_sum(src, seg, n):
    out = torch.zeros((n,) + src.shape[1:], dtype=src.dtype)
    return out.index_add_(0, seg, src)
def _pad(x, pw):
    flat = tuple(v for pair in reversed(pw) for v in pair)
    return torch.nn.functional.pad(x, flat)

kernel_name = 'parallel_sum__gqa_block_cached__moe_arch_mod__decode'

def setup_inputs():

    _w = (lambda a: (lambda t: t.to(torch.bfloat16) if t.is_floating_point() else t)(torch.as_tensor(a)))
    def _A_setup():
        B, Sq, D = 1, 1, 512
        Hq, Hkv, Sk, Dh = 32, 8, 65536, 128
        assert Hq % Hkv == 0, (Hq, Hkv)
        return {
            "x": _w((lambda *s: torch.randn(*s, dtype=torch.bfloat16) * 0.05)(B, Sq, D)),
            "k_cache": _w((lambda *s: torch.randn(*s, dtype=torch.bfloat16) * 3.2)(B, Hkv, Sk, Dh)),
            "v_cache": _w((lambda *s: torch.randn(*s, dtype=torch.bfloat16) * 1.6)(B, Hkv, Sk, Dh)),
            "wq": _w((lambda *s: torch.randn(*s, dtype=torch.bfloat16) * 3.2)(D, Hq * Dh) * (D ** -0.5)),
            "wo": _w((lambda *s: torch.randn(*s, dtype=torch.bfloat16) * 1.6)(Hq * Dh, D) * ((Hq * Dh) ** -0.5)),
        }
    _A_in = _A_setup()

    def _B_setup():
        B, S, D, F, C = 1, 1, 512, 1792, 1
        return {
            "x": _w((lambda *s: torch.randn(*s, dtype=torch.bfloat16) * 0.05)(B, S, D)),
            "w_r": _w((lambda *s: torch.randn(*s, dtype=torch.bfloat16) * 0.1)(D)),
            "w_gate": _w((lambda *s: torch.randn(*s, dtype=torch.bfloat16) * 0.1)(D, F)),
            "w_up": _w((lambda *s: torch.randn(*s, dtype=torch.bfloat16) * 0.1)(D, F)),
            "w_down": _w((lambda *s: torch.randn(*s, dtype=torch.bfloat16) * 0.1)(F, D)),
        }
    _B_in = _B_setup()

    return {
        "A_x": _A_in["x"],
        "A_k_cache": _A_in["k_cache"],
        "A_v_cache": _A_in["v_cache"],
        "A_wq": _A_in["wq"],
        "A_wo": _A_in["wo"],
        "B_x": _B_in["x"],
        "B_w_r": _B_in["w_r"],
        "B_w_gate": _B_in["w_gate"],
        "B_w_up": _B_in["w_up"],
        "B_w_down": _B_in["w_down"],
    }

def reference(A_x, A_k_cache, A_v_cache, A_wq, A_wo, B_x, B_w_r, B_w_gate, B_w_up, B_w_down):
    def _A_ref(x, k_cache, v_cache, wq, wo):
        B, Sq, D = x.shape
        Hq, Dh = 32, 128
        Hkv = k_cache.shape[1]
        rep = Hq // Hkv
        q = (lambda x, *d: x.permute(*d))((x @ wq).reshape(B, Sq, Hq, Dh), 0, 2, 1, 3)
        k = (lambda x, n, axis: torch.repeat_interleave(x, n, dim=axis))(k_cache, rep, axis=1)
        v = (lambda x, n, axis: torch.repeat_interleave(x, n, dim=axis))(v_cache, rep, axis=1)
        scores = torch.einsum("bhqd,bhkd->bhqk", q, k) * (Dh ** -0.5)
        p = _softmax(scores, axis=-1)
        o = torch.einsum("bhqk,bhkd->bhqd", p, v)
        return (lambda x, *d: x.permute(*d))(o, 0, 2, 1, 3).reshape(B, Sq, Hq * Dh) @ wo

    def _B_ref(x, w_r, w_gate, w_up, w_down):
        B, S, D = x.shape
        C = 1
        r = x @ w_r
        idx = torch.argsort(-r, axis=-1)[:, :C]
        idx_e = (lambda x, n, axis: torch.repeat_interleave(x, n, dim=axis))(idx.reshape(B, C, 1), D, axis=2)
        x_sel = (lambda x, i, axis: torch.take_along_dim(x, i, dim=axis))(x, idx_e, axis=1)
        g = _silu(x_sel @ w_gate)
        u = x_sel @ w_up
        y = (g * u) @ w_down
        r_sel = _sigmoid((lambda x, i, axis: torch.take_along_dim(x, i, dim=axis))(r, idx, axis=1))
        y = y * r_sel.reshape(B, C, 1)
        b_off = (torch.arange(B) * S).reshape(B, 1)
        flat_idx = (idx + b_off).reshape(B * C)
        zero = (x * 0.0).reshape(B * S, D)
        upd = _scatter_add(zero, flat_idx, y.reshape(B * C, D), axis=0)
        return x + upd.reshape(B, S, D)

    x = A_x
    xn = _layernorm(x, axis=-1)
    return x + _A_ref(xn, A_k_cache, A_v_cache, A_wq, A_wo) + _B_ref(xn, B_w_r, B_w_gate, B_w_up, B_w_down)
```

```python
import re

def _regs(tok):
    tok = tok.strip()
    neg = tok.lstrip('-').strip('|')
    m = re.fullmatch(r'([vsa])(\d+)', neg)
    if m: return [(m.group(1), int(m.group(2)))]
    m = re.fullmatch(r'([vsa])\[(\d+):(\d+)\]', neg)
    if m: return [(m.group(1), k) for k in range(int(m.group(2)), int(m.group(3)) + 1)]
    if neg in ('vcc',): return [('x', 'vcc_lo'), ('x', 'vcc_hi')]
    if neg in ('vcc_lo', 'vcc_hi', 'm0'): return [('x', neg)]
    if neg == 'exec': return [('x', 'exec_lo'), ('x', 'exec_hi')]
    if neg in ('exec_lo', 'exec_hi'): return [('x', neg)]
    return []

TRANS = ('v_exp_f32', 'v_log_f32', 'v_rcp_f32', 'v_rsq_f32', 'v_sqrt_f32', 'v_sin_f32', 'v_cos_f32')

class Ins:
    def __init__(self, text):
        self.text = text
        t = text.split(';')[0].strip()
        self.is_label = t.endswith(':')
        self.is_dir = t.startswith('.')
        self.mn = ''
        self.dst = []; self.src = []; self.srcC = []; self.srcAB = []
        self.states = 1
        if self.is_label or self.is_dir or not t:
            self.states = 0
            self.kind = 'none'
            return
        parts = t.split(None, 1)
        mn = parts[0]; self.mn = mn
        rest = parts[1] if len(parts) > 1 else ''
        ops = []; cur = ''; depth = 0
        for ch in rest:
            if ch == '[': depth += 1
            if ch == ']': depth -= 1
            if ch == ',' and depth == 0:
                ops.append(cur.strip()); cur = ''
            else: cur += ch
        if cur.strip(): ops.append(cur.strip())
        mods = ''
        if ops:
            sp = ops[-1].split(None, 1)
            ops[-1] = sp[0]
            if len(sp) > 1: mods = sp[1]
        self.ops = ops; self.mods = mods
        base = re.sub(r'_(e32|e64|dpp|sdwa)$', '', mn)
        self.base = base
        self.dpp = mn.endswith('_dpp') or 'row_' in mods or 'quad_perm' in mods
        if mn == 's_nop':
            self.kind = 'salu'; self.states = int(ops[0], 0) + 1; return
        if mn.startswith('v_mfma'):
            self.kind = 'mfma'
            self.dst = _regs(ops[0]); self.srcAB = _regs(ops[1]) + _regs(ops[2]); self.srcC = _regs(ops[3])
            self.src = self.srcAB + self.srcC
            self.passes = 8 if '32x32' in mn else 4
            assert '16x16x32' in mn or '32x32x16' in mn or '16x16x16' in mn, mn
            return
        if mn.startswith('v_'):
            self.kind = 'valu'
            self.trans = base in TRANS
            self.dot = base.startswith('v_dot')
            self.permlane = base.startswith('v_permlane')
            self.readlane = base in ('v_readlane_b32', 'v_readfirstlane_b32')
            if base.startswith('v_cmp'):
                self.dst = _regs(ops[0]); self.src = sum((_regs(o) for o in ops[1:]), [])
            elif self.permlane:
                self.dst = _regs(ops[0]) + _regs(ops[1]); self.src = list(self.dst)
            else:
                self.dst = _regs(ops[0]); self.src = sum((_regs(o) for o in ops[1:]), [])
                if base in ('v_fmac_f32', 'v_dot2c_f32_bf16', 'v_mac_f32', 'v_writelane_b32', 'v_pk_fmac_f16'):
                    self.src += self.dst
                    if base == 'v_dot2c_f32_bf16': self.srcC = list(self.dst); self.srcAB = sum((_regs(o) for o in ops[1:]), [])
                if base == 'v_dot2_f32_bf16':
                    self.srcC = _regs(ops[3]); self.srcAB = _regs(ops[1]) + _regs(ops[2])
                if base == 'v_cndmask_b32' and len(ops) == 3:
                    self.src += _regs('vcc')
                if base in ('v_add_co_u32', 'v_sub_co_u32', 'v_addc_co_u32'):
                    self.dst += _regs(ops[1])
                if self.dpp and self.base == 'v_mov_b32':
                    self.src += self.dst
            if base == 'v_readlane_b32' or base == 'v_writelane_b32':
                self.lanesel = _regs(ops[2])
            else:
                self.lanesel = []
            return
        if mn.startswith('buffer_') or mn.startswith('global_'):
            self.kind = 'vmem'
            self.lds = ' lds' in (' ' + mods) and 'load' in mn
            self.store = 'store' in mn or 'atomic' in mn
            allr = [_regs(o) for o in ops]
            if mn.startswith('buffer_'):
                if self.lds:
                    self.src = sum(allr, []); self.data = []
                elif self.store:
                    self.src = sum(allr, []); self.data = allr[0]
                else:
                    self.dst = allr[0]; self.src = sum(allr[1:], []); self.data = []
            else:
                if self.store:
                    self.src = sum(allr, []); self.data = allr[1]
                else:
                    self.dst = allr[0]; self.src = sum(allr[1:], []); self.data = []
            self.wide = self.store and ('x4' in mn or 'x3' in mn)
            return
        if mn.startswith('ds_'):
            self.kind = 'ds'
            allr = [_regs(o) for o in ops]
            if 'read' in mn or 'bpermute' in mn or 'permute' in mn or 'rtn' in mn or 'swizzle' in mn:
                self.dst = allr[0]; self.src = sum(allr[1:], [])
            else:
                self.src = sum(allr, [])
            return
        if mn.startswith('s_'):
            self.kind = 'salu'
            if mn.startswith('s_cmp') or mn.startswith('s_cbranch') or mn in ('s_branch', 's_waitcnt', 's_barrier', 's_endpgm', 's_sleep', 's_setprio', 's_bitcmp1_b32', 's_bitcmp0_b32'):
                self.src = sum((_regs(o) for o in ops), [])
            else:
                self.dst = _regs(ops[0]) if ops else []
                self.src = sum((_regs(o) for o in ops[1:]), [])
                if 'saveexec' in mn:
                    self.dst = self.dst + _regs('exec')
            return
        raise ValueError('unknown instruction ' + text)

def _ov(a, b):
    return bool(set(a) & set(b))

def need(A, B):
    n = 0
    if A.kind == 'valu':
        vd = [r for r in A.dst if r[0] in 'va']
        sd = [r for r in A.dst if r[0] in 'sx']
        if B.kind == 'valu':
            if B.dpp and _ov(vd, B.src): n = max(n, 2)
            if B.permlane and _ov(vd, B.src): n = max(n, 2)
            if B.readlane and _ov(vd, B.src): n = max(n, 1)
            if sd and _ov(sd, B.lanesel): n = max(n, 4)
            if sd and _ov(sd, B.src): n = max(n, 2)
            if A.trans and not B.trans and _ov(vd, B.src): n = max(n, 1)
            if A.dot:
                if _ov(vd, B.src + B.dst):
                    if B.dot and B.base == A.base:
                        if _ov(vd, B.srcAB): n = max(n, 3)
                    else:
                        n = max(n, 3)
            if 'sdwa' in A.mn and 'dst_sel:DWORD' not in A.mods and _ov(vd, B.src + B.dst): n = max(n, 1)
        if B.kind == 'mfma':
            if _ov(vd, B.src): n = max(n, 2)
            if A.dot and _ov(vd, B.src + B.dst): n = max(n, 3)
            if _ov([r for r in A.dst if r[0] == 'x'], _regs('exec')): n = max(n, 4)
        if B.kind in ('vmem', 'ds'):
            if sd and _ov(sd, B.src): n = max(n, 5)
            if A.trans and _ov(vd, B.src): n = max(n, 1)
            if A.dot and _ov(vd, B.src + B.dst): n = max(n, 3)
    if A.kind == 'mfma':
        full = {4: 8, 8: 12}[A.passes]
        part = {4: 6, 8: 10}[A.passes]
        war = {4: 3, 8: 7}[A.passes]
        if B.kind == 'mfma':
            if _ov(A.dst, B.srcC):
                if B.srcC == A.dst and B.passes == A.passes: pass
                else: n = max(n, part)
            if _ov(A.dst, B.srcAB): n = max(n, full)
            if _ov(A.dst, B.dst) and not (B.srcC == A.dst):
                n = max(n, part)
        elif B.kind == 'valu':
            if _ov(A.dst, B.src + B.dst): n = max(n, full)
            if _ov(A.srcC, B.dst): n = max(n, war)
        elif B.kind in ('vmem', 'ds'):
            if _ov(A.dst, B.src + B.dst): n = max(n, full)
    if A.kind == 'vmem' and getattr(A, 'wide', False):
        if B.kind == 'valu' and _ov(A.data, B.dst): n = max(n, 2)
        elif B.kind in ('mfma',) and _ov(A.data, B.dst): n = max(n, 2)
        elif _ov(A.data, B.dst): n = max(n, 1)
    if A.kind == 'ds' and A.mn in ('ds_write_b128', 'ds_write_b96'):
        if B.kind == 'valu' and _ov(A.src, B.dst): n = max(n, 1)
    if A.kind == 'salu':
        if ('x', 'm0') in A.dst and B.kind == 'vmem' and B.lds: n = max(n, 1)
    return n

def pad(lines, check_only=False):
    out = []
    hist = []
    for t in lines:
        I = Ins(t)
        if I.kind == 'none':
            out.append(t); continue
        dist = 0; req = 0
        for A in reversed(hist):
            r = need(A, I)
            if r > dist: req = max(req, r - dist)
            dist += A.states
            if dist >= 24: break
        if req > 0:
            if check_only:
                raise RuntimeError(f'hazard: {t} needs {req} more wait states')
            nop = f'  s_nop {req-1}'
            out.append(nop); hist.append(Ins(nop))
        out.append(t); hist.append(I)
    return out

def check_loops(lines):
    pos = {}
    for k, t in enumerate(lines):
        s = t.split(';')[0].strip()
        if s.endswith(':'): pos[s[:-1]] = k
    for k, t in enumerate(lines):
        s = t.split(';')[0].strip()
        m = re.match(r'(s_cbranch\w+|s_branch)\s+(\S+)', s)
        if m and m.group(2) in pos:
            tgt = pos[m.group(2)]
            if tgt < k:
                seq = lines[max(tgt, k - 30):k + 1] + lines[tgt + 1: tgt + 31]
                pad(seq, check_only=True)
            else:
                seq = lines[max(0, k - 30):k + 1] + lines[tgt + 1: tgt + 31]
                pad(seq, check_only=True)

class VM:
    def __init__(self, emit):
        self.q = []; self.emit = emit
    def issue(self, name):
        self.q.append(name)
        assert len(self.q) <= 63, 'vmcnt overflow'
    def wait(self, name, extra=''):
        idx = max(k for k, n in enumerate(self.q) if n == name)
        n = len(self.q) - 1 - idx
        self.emit(f'  s_waitcnt vmcnt({n}){extra}')
        self.q = self.q[idx + 1:]
    def wait_all(self, extra=''):
        self.emit(f'  s_waitcnt vmcnt(0){extra}')
        self.q = []
```

```python
import sys
from asmlib import pad, check_loops, VM
NAME = 'parallel_sum__gqa_block_cached__moe_arch_mod__decode_kernel'

WS_GEN = 0x0
WS_HQ = 0x1000
WS_H1O = 0x100000
WS_H1ML = 0x200000
WS_H2 = 0x300000
WS_STAMP = 0x10000000
L_PO = 0x0000
L_ML = 0x4000
L_Q = 0x4100
L_XN = 0x4800
L_BASE = 0x5000
L_SIZE = 0x5800

POLL_LIMIT = 20000
LOG2E = 0x3fb8aa3b
SCALE = 0x3db504f3

HEADER = open('parallel_sum__gqa_block_cached__moe_arch_mod__decode.s.ref').read().split('; Override launch')[0]

def gen(stamps=False, kflags='nt', wflags='nt'):
    L = []
    def A(s): L.append('  ' + s)
    def LAB(s): L.append(s + ':')
    def C(s): L.append('  ; ' + s)

    def srd(q, lo, hi, n):
        A(f's_mov_b32 s{q}, s{lo}'); A(f's_mov_b32 s{q+1}, s{hi}')
        A(f's_mov_b32 s{q+2}, {n:#x}'); A(f's_mov_b32 s{q+3}, 0x20000')

    def allreduce(op, regs, tmps, steps):
        for st in steps:
            if st.startswith('ror'):
                n = int(st[3:])
                for r in regs:
                    A(f'{op}_dpp v{r}, v{r}, v{r} row_ror:{n} row_mask:0xf bank_mask:0xf')
            else:
                sw = 'v_permlane16_swap_b32' if st == 'x16' else 'v_permlane32_swap_b32'
                for r, t in zip(regs, tmps): A(f'v_mov_b32 v{t}, v{r}')
                for r, t in zip(regs, tmps): A(f'{sw} v{t}, v{r}')
                for r, t in zip(regs, tmps): A(f'{op} v{r}, v{r}, v{t}')

    def rne(regs, tmps):
        for k in range(0, len(regs), 2):
            a = regs[k]; b = regs[k + 1] if k + 1 < len(regs) else a
            A(f'v_cvt_pk_bf16_f32 v{tmps[k//2]}, v{a}, v{b}')
        for k in range(0, len(regs), 2):
            a = regs[k]
            A(f'v_lshlrev_b32 v{a}, 16, v{tmps[k//2]}')
            if k + 1 < len(regs):
                A(f'v_and_b32 v{regs[k+1]}, 0xffff0000, v{tmps[k//2]}')

    ALL6 = ['ror1', 'ror2', 'ror4', 'ror8', 'x16', 'x32']
    PAR5 = ['ror2', 'ror4', 'ror8', 'x16', 'x32']

    def stamp(k):
        if stamps:
            A(f's_memrealtime s[{84+2*k}:{85+2*k}]')

    L.append(f'{NAME}:')
    A('s_cmp_ge_u32 s2, 256')
    A('s_cbranch_scc1 L_end')
    A('s_load_dwordx16 s[16:31], s[0:1], 0')
    A('s_load_dwordx8 s[32:39], s[0:1], 64')
    A('s_load_dwordx2 s[40:41], s[0:1], 96')
    stamp(0)
    A('v_lshrrev_b32 v1, 6, v0')
    A('v_and_b32 v0, 63, v0')
    A('v_readfirstlane_b32 s3, v1')
    A('s_and_b32 s4, s2, 7')
    A('s_lshr_b32 s5, s2, 3')
    A(f's_mov_b32 s43, {LOG2E:#x}')
    A('s_mov_b32 s44, 0x05040100')
    A('s_mov_b32 s45, 0x07060302')
    A(f's_mov_b32 s46, {SCALE:#x}')
    A(f's_mov_b32 s47, {SCALE:#x}')
    A('s_cmp_eq_u32 s3, 0')
    A('s_cbranch_scc1 L_service')

    SK, SV, SW = 48, 52, 56
    vK, vV, vM, vML, vL, vAl = 1, 2, 3, 4, 5, 6
    T0, T1, T2, T3 = 8, 9, 10, 11
    Q, P, S, F, O, KR, VR = 12, 20, 24, 40, 56, 88, 120
    C('stream wave')
    A('s_sub_u32 s3, s3, 1')
    A(f'v_and_b32 v{vK}, 7, v0')
    A(f'v_lshlrev_b32 v{vK}, 8, v{vK}')
    A(f'v_bfe_u32 v{T0}, v0, 3, 1')
    A(f'v_lshl_add_u32 v{vK}, v{T0}, 6, v{vK}')
    A(f'v_lshrrev_b32 v{T0}, 4, v0')
    A(f'v_lshl_add_u32 v{vK}, v{T0}, 4, v{vK}')
    A(f'v_and_b32 v{vV}, 15, v0')
    A(f'v_lshlrev_b32 v{vV}, 4, v{vV}')
    A(f'v_bfe_u32 v{T0}, v0, 4, 1')
    A(f'v_lshl_add_u32 v{vV}, v{T0}, 10, v{vV}')
    A(f'v_lshrrev_b32 v{T0}, 5, v0')
    A(f'v_lshl_add_u32 v{vV}, v{T0}, 12, v{vV}')
    A('s_lshl_b32 s6, s5, 3')
    A('s_add_u32 s6, s6, s3')
    A('s_lshl_b32 s6, s6, 13')
    A('s_lshl_b32 s7, s4, 24')
    A('s_add_u32 s6, s6, s7')
    A('s_add_u32 s7, s6, 4096')
    A('s_waitcnt lgkmcnt(0)')
    A('s_load_dword s42, s[40:41], 0')
    srd(SK, 18, 19, 0x8000000)
    srd(SV, 20, 21, 0x8000000)
    srd(SW, 40, 41, 0x10100000 if stamps else 0x400000)

    def kloads():
        for T in range(4):
            for j in range(2):
                r = KR + (T * 2 + j) * 4
                so = 's6' if T < 2 else 's7'
                A(f'buffer_load_dwordx4 v[{r}:{r+3}], v{vK}, s[{SK}:{SK+3}], {so} offen offset:{(T%2)*2048 + j*128} {kflags}')
    def vloads():
        for j8 in range(8):
            r = VR + j8 * 4
            A(f'buffer_load_dwordx4 v[{r}:{r+3}], v{vV}, s[{SV}:{SV+3}], s6 offen offset:{(j8//4)*2048 + (j8%4)*256} {kflags}')

    A('s_barrier')
    kloads()
    A('s_barrier')
    vloads()
    for k in range(32): A(f'v_mov_b32 v{O+k}, 0')
    A(f'v_mov_b32 v{vM}, 0xff800000')
    A(f'v_mov_b32 v{vML}, 0xff800000')
    A(f'v_mov_b32 v{vL}, 0')
    A(f'v_and_b32 v{T0}, 3, v0')
    A(f'v_lshlrev_b32 v{T0}, 8, v{T0}')
    A(f'v_bfe_u32 v{T1}, v0, 3, 1')
    A(f'v_lshl_add_u32 v{T0}, v{T1}, 6, v{T0}')
    A(f'v_lshrrev_b32 v{T1}, 4, v0')
    A(f'v_lshl_add_u32 v{T0}, v{T1}, 4, v{T0}')
    A('s_mov_b32 s8, 0')
    A('s_barrier')
    A(f'ds_read_b128 v[{Q}:{Q+3}], v{T0} offset:{L_Q}')
    A(f'ds_read_b128 v[{Q+4}:{Q+7}], v{T0} offset:{L_Q+128}')
    A('s_waitcnt lgkmcnt(0)')
    LAB('L_loop')
    A('s_add_u32 s6, s6, 0x200000')
    A('s_add_u32 s7, s7, 0x200000')
    A('s_cmp_lt_u32 s8, 7')
    A(f's_cselect_b32 s{SK+2}, 0x8000000, 0')
    A(f's_cselect_b32 s{SV+2}, 0x8000000, 0')
    A('s_waitcnt vmcnt(8)')
    for T in range(4):
        A(f'v_mfma_f32_16x16x32_bf16 v[{S+4*T}:{S+4*T+3}], v[{KR+8*T}:{KR+8*T+3}], v[{Q}:{Q+3}], 0')
    for T in range(4):
        A(f'v_mfma_f32_16x16x32_bf16 v[{S+4*T}:{S+4*T+3}], v[{KR+8*T+4}:{KR+8*T+7}], v[{Q+4}:{Q+7}], v[{S+4*T}:{S+4*T+3}]')
    kloads()
    for r in range(4):
        A(f'v_permlane32_swap_b32 v{S+r}, v{S+8+r}')
        A(f'v_permlane32_swap_b32 v{S+4+r}, v{S+12+r}')
    for r in range(4):
        A(f'v_add_f32_dpp v{S+r}, v{S+8+r}, v{S+r} row_ror:8 row_mask:0xf bank_mask:0xf')
        A(f'v_add_f32_dpp v{S+4+r}, v{S+12+r}, v{S+4+r} row_ror:8 row_mask:0xf bank_mask:0xf')
    Z = list(range(S, S + 8)); TT = list(range(S + 8, S + 12))
    rne(Z, TT)
    for k in range(0, 8, 2):
        A(f'v_pk_mul_f32 v[{Z[k]}:{Z[k]+1}], v[{Z[k]}:{Z[k]+1}], s[46:47]')
    rne(Z, TT)
    A(f'v_max3_f32 v{T0}, v{Z[0]}, v{Z[1]}, v{Z[2]}')
    A(f'v_max3_f32 v{T1}, v{Z[3]}, v{Z[4]}, v{Z[5]}')
    A(f'v_max3_f32 v{T0}, v{Z[6]}, v{Z[7]}, v{T0}')
    A(f'v_max_f32 v{T0}, v{T0}, v{T1}')
    allreduce('v_max_f32', [T0], [T1], ['x16', 'x32'])
    A(f'v_max_f32 v{vM}, v{vM}, v{T0}')
    A(f'v_mul_f32 v{T1}, s43, v{vM}')
    A(f'v_sub_f32 v{T0}, v{vML}, v{T1}')
    A(f'v_mov_b32 v{vML}, v{T1}')
    A(f'v_exp_f32 v{vAl}, v{T0}')
    for k in range(8):
        A(f'v_fma_f32 v{Z[k]}, v{Z[k]}, s43, -v{vML}')
    for k in range(8):
        A(f'v_exp_f32 v{Z[k]}, v{Z[k]}')
    for k in range(16):
        A(f'v_pk_mul_f32 v[{O+2*k}:{O+2*k+1}], v[{O+2*k}:{O+2*k+1}], v[{vAl}:{vAl+1}] op_sel_hi:[1,0]')
    for k in range(4):
        A(f'v_cvt_pk_bf16_f32 v{P+k}, v{Z[2*k]}, v{Z[2*k+1]}')
    A(f'v_pk_add_f32 v[{Z[0]}:{Z[1]}], v[{Z[0]}:{Z[1]}], v[{Z[2]}:{Z[3]}]')
    A(f'v_pk_add_f32 v[{Z[4]}:{Z[5]}], v[{Z[4]}:{Z[5]}], v[{Z[6]}:{Z[7]}]')
    A(f'v_pk_add_f32 v[{Z[0]}:{Z[1]}], v[{Z[0]}:{Z[1]}], v[{Z[4]}:{Z[5]}]')
    A(f'v_add_f32 v{Z[0]}, v{Z[0]}, v{Z[1]}')
    A(f'v_fma_f32 v{vL}, v{vL}, v{vAl}, v{Z[0]}')
    A('s_waitcnt vmcnt(8)')
    for t in range(4):
        fb = F + (t % 2) * 8
        for jj in range(4):
            A(f'v_perm_b32 v{fb+jj}, v{VR+(2*jj+1)*4+t}, v{VR+(2*jj)*4+t}, s44')
        for jj in range(4):
            A(f'v_perm_b32 v{fb+4+jj}, v{VR+(2*jj+1)*4+t}, v{VR+(2*jj)*4+t}, s45')
        o0 = O + (2 * t) * 4; o1 = O + (2 * t + 1) * 4
        A(f'v_mfma_f32_16x16x32_bf16 v[{o0}:{o0+3}], v[{fb}:{fb+3}], v[{P}:{P+3}], v[{o0}:{o0+3}]')
        A(f'v_mfma_f32_16x16x32_bf16 v[{o1}:{o1+3}], v[{fb+4}:{fb+7}], v[{P}:{P+3}], v[{o1}:{o1+3}]')
    vloads()
    A('s_add_u32 s8, s8, 1')
    A('s_cmp_lt_u32 s8, 8')
    A('s_cbranch_scc1 L_loop')
    allreduce('v_add_f32', [vL], [T1], ['x16', 'x32'])
    A(f'v_and_b32 v{T0}, 3, v0')
    A(f'v_lshlrev_b32 v{T0}, 6, v{T0}')
    A(f'v_lshrrev_b32 v{T1}, 4, v0')
    A(f'v_lshl_add_u32 v{T0}, v{T1}, 4, v{T0}')
    A('s_lshl_b32 s9, s3, 11')
    A(f'v_add_u32 v{T0}, s9, v{T0}')
    A(f'v_and_b32 v{T2}, 3, v0')
    A(f'v_lshlrev_b32 v{T2}, 3, v{T2}')
    A('s_lshl_b32 s9, s3, 5')
    A(f'v_add_u32 v{T2}, s9, v{T2}')
    A(f'v_mov_b32 v{S}, v{vM}')
    A(f'v_mov_b32 v{S+1}, v{vL}')
    A('s_mov_b32 exec_lo, 0x000f000f')
    A('s_mov_b32 exec_hi, 0x000f000f')
    for i in range(8):
        A(f'ds_write_b128 v{T0}, v[{O+4*i}:{O+4*i+3}] offset:{L_PO + i*256}')
    A('s_mov_b32 exec_lo, 0xf')
    A('s_mov_b32 exec_hi, 0')
    A(f'ds_write_b64 v{T2}, v[{S}:{S+1}] offset:{L_ML}')
    A('s_mov_b64 exec, -1')
    A('s_waitcnt lgkmcnt(0)')
    A('s_barrier')
    A('s_cmp_ge_u32 s3, 4')
    A('s_cbranch_scc1 L_end')
    A(f'v_lshlrev_b32 v{T0}, 3, v0')
    A('s_lshl_b32 s9, s3, 9')
    A(f'v_add_u32 v{T0}, s9, v{T0}')
    A(f'v_bfe_u32 v{T1}, v0, 3, 2')
    A(f'v_lshlrev_b32 v{T2}, 3, v{T1}')
    MO = 56; MM = 72
    for w in range(8):
        A(f'ds_read_b64 v[{MM+2*w}:{MM+2*w+1}], v{T2} offset:{L_ML + w*32}')
    for w in range(8):
        A(f'ds_read_b64 v[{MO+2*w}:{MO+2*w+1}], v{T0} offset:{L_PO + w*2048}')
    A(f'v_lshlrev_b32 v{T1}, 10, v{T1}')
    A(f'v_and_b32 v{T3}, 7, v0')
    A(f'v_lshl_add_u32 v{T1}, v{T3}, 4, v{T1}')
    A(f'v_lshrrev_b32 v{T3}, 5, v0')
    A(f'v_lshl_add_u32 v{T1}, v{T3}, 7, v{T1}')
    A('s_lshl_b32 s9, s3, 8')
    A('s_lshl_b32 s10, s2, 12')
    A('s_add_u32 s9, s9, s10')
    A(f's_add_u32 s9, s9, {WS_H1O:#x}')
    A('s_mul_i32 s42, s42, 1664525')
    A('s_add_u32 s42, s42, 1013904223')
    A('s_waitcnt lgkmcnt(8)')
    mm = [MM + 2 * w for w in range(8)]
    A(f'v_max3_f32 v{S}, v{mm[0]}, v{mm[1]}, v{mm[2]}')
    A(f'v_max3_f32 v{S+1}, v{mm[3]}, v{mm[4]}, v{mm[5]}')
    A(f'v_max3_f32 v{S}, v{mm[6]}, v{mm[7]}, v{S}')
    A(f'v_max_f32 v{S}, v{S}, v{S+1}')
    for w in range(8):
        A(f'v_sub_f32 v{mm[w]}, v{mm[w]}, v{S}')
    for w in range(8):
        A(f'v_mul_f32 v{mm[w]}, s43, v{mm[w]}')
    for w in range(8):
        A(f'v_exp_f32 v{mm[w]}, v{mm[w]}')
    A(f'v_mul_f32 v{S+2}, v{mm[0]}, v{mm[0]+1}')
    for w in range(1, 8):
        A(f'v_fmac_f32 v{S+2}, v{mm[w]}, v{mm[w]+1}')
    A('s_waitcnt lgkmcnt(0)')
    A(f'v_mul_f32 v{S+4}, v{mm[0]}, v{MO}')
    A(f'v_mul_f32 v{S+6}, v{mm[0]}, v{MO+1}')
    for w in range(1, 8):
        A(f'v_fmac_f32 v{S+4}, v{mm[w]}, v{MO+2*w}')
        A(f'v_fmac_f32 v{S+6}, v{mm[w]}, v{MO+2*w+1}')
    A(f'v_mov_b32 v{S+5}, s42')
    A(f'v_mov_b32 v{S+7}, s42')
    A(f'buffer_store_dwordx4 v[{S+4}:{S+7}], v{T1}, s[{SW}:{SW+3}], s9 offen sc1')
    A('s_cmp_lg_u32 s3, 0')
    A('s_cbranch_scc1 L_end')
    A(f'v_mov_b32 v{S+1}, s42')
    A(f'v_mov_b32 v{S+3}, s42')
    A(f'v_bfe_u32 v{T1}, v0, 3, 2')
    A(f'v_lshlrev_b32 v{T1}, 4, v{T1}')
    A('s_lshl_b32 s9, s2, 6')
    A(f's_add_u32 s9, s9, {WS_H1ML:#x}')
    A('s_mov_b32 exec_lo, 0x01010101')
    A('s_mov_b32 exec_hi, 0')
    A(f'buffer_store_dwordx4 v[{S}:{S+3}], v{T1}, s[{SW}:{SW+3}], s9 offen sc1')
    A('s_endpgm')

    LAB('L_service')
    SX, SWQ, SW, SWR, SG, SU, SD, SO, SOUT = 48, 52, 56, 60, 64, 68, 72, 76, 80
    vm = VM(lambda s: L.append(s))
    RA, RB = 32, 96
    X = 24; Fv = list(range(8, 16)); XN = list(range(16, 24))
    A('s_setprio 3')
    A('s_mov_b32 s99, 0')
    A('v_lshlrev_b32 v1, 4, v0')
    A('v_lshrrev_b32 v2, 1, v0')
    A('v_lshlrev_b32 v2, 13, v2')
    A('v_and_b32 v3, 1, v0')
    A('v_lshl_add_u32 v2, v3, 4, v2')
    A('s_lshl_b32 s6, s4, 10')
    A('s_lshl_b32 s7, s5, 5')
    A('s_add_u32 s6, s6, s7')
    A('s_waitcnt lgkmcnt(0)')
    A('s_load_dword s42, s[40:41], 0')
    srd(SX, 16, 17, 1024)
    srd(SWQ, 22, 23, 512 * 8192)
    A(f'buffer_load_dwordx4 v[{X}:{X+3}], v1, s[{SX}:{SX+3}], 0 offen'); vm.issue('x')
    for i in range(16):
        r = RA + 4 * i
        A(f'buffer_load_dwordx4 v[{r}:{r+3}], v2, s[{SWQ}:{SWQ+3}], s6 offen {wflags}'); vm.issue('wq%d' % i)
        if i < 15: A('s_add_u32 s6, s6, 0x40000')
    A('s_barrier')
    srd(SW, 40, 41, 0x10100000 if stamps else 0x400000)
    srd(SWR, 28, 29, 1024)
    srd(SG, 30, 31, 512 * 3584)
    srd(SU, 32, 33, 512 * 3584)
    srd(SD, 34, 35, 1792 * 1024)
    srd(SO, 24, 25, 4096 * 1024)
    srd(SOUT, 36, 37, 1024)
    vm.wait('x')
    for k in range(4):
        A(f'v_lshlrev_b32 v{Fv[2*k]}, 16, v{X+k}')
        A(f'v_and_b32 v{Fv[2*k+1]}, 0xffff0000, v{X+k}')
    A(f'v_add_f32 v4, v{Fv[0]}, v{Fv[1]}')
    for k in range(2, 8): A(f'v_add_f32 v4, v4, v{Fv[k]}')
    allreduce('v_add_f32', [4], [5], ALL6)
    A('v_mul_f32 v4, 0x3b000000, v4')
    for k in range(8): A(f'v_sub_f32 v{XN[k]}, v{Fv[k]}, v4')
    A(f'v_mul_f32 v6, v{XN[0]}, v{XN[0]}')
    for k in range(1, 8): A(f'v_fmac_f32 v6, v{XN[k]}, v{XN[k]}')
    allreduce('v_add_f32', [6], [5], ALL6)
    A('v_mul_f32 v6, 0x3b000000, v6')
    rne([4, 6], [5])
    A('v_add_f32 v6, 0x3727c5ac, v6')
    rne([6], [5])
    A('v_sqrt_f32 v6, v6')
    rne([6], [5])
    A('v_rcp_f32 v7, v6')
    for k in range(8): A(f'v_sub_f32 v{XN[k]}, v{Fv[k]}, v4')
    rne(XN, [28, 29, 30, 31])
    for k in range(8):
        A(f'v_mul_f32 v{RB+k}, v{XN[k]}, v7')
    for k in range(8):
        A(f'v_fma_f32 v{XN[k]}, -v{RB+k}, v6, v{XN[k]}')
    for k in range(8):
        A(f'v_fma_f32 v{XN[k]}, v{XN[k]}, v7, v{RB+k}')
    rne(XN, [28, 29, 30, 31])
    A('v_lshlrev_b32 v4, 5, v0')
    A(f'ds_write_b128 v4, v[{XN[0]}:{XN[3]}] offset:{L_XN}')
    A(f'ds_write_b128 v4, v[{XN[4]}:{XN[7]}] offset:{L_XN+16}')
    for k in range(8): A(f'v_add_f32 v{Fv[k]}, v{Fv[k]}, v{XN[k]}')
    A(f'ds_write_b128 v4, v[{Fv[0]}:{Fv[3]}] offset:{L_BASE}')
    A(f'ds_write_b128 v4, v[{Fv[4]}:{Fv[7]}] offset:{L_BASE+16}')
    A('v_lshrrev_b32 v5, 1, v0')
    A('v_lshlrev_b32 v5, 2, v5')
    A('s_waitcnt lgkmcnt(0)')
    XR = RB
    for i in range(16):
        A(f'ds_read_b32 v{XR+i}, v5 offset:{L_XN + i*128}')
    ACC = Fv
    for k in range(8): A(f'v_mov_b32 v{ACC[k]}, 0')
    A('s_waitcnt lgkmcnt(0)')
    stamp(1)
    for i in range(16):
        vm.wait('wq%d' % i)
        A(f'v_lshrrev_b32 v28, 16, v{XR+i}')
        for dw in range(4):
            A(f'v_dot2c_f32_bf16 v{ACC[2*dw]}, v{RA+4*i+dw}, v28')
            A(f'v_dot2c_f32_bf16 v{ACC[2*dw+1]}, v{RA+4*i+dw}, v{XR+i}')
    allreduce('v_add_f32', ACC, list(range(RB + 16, RB + 24)), PAR5)
    A('s_waitcnt lgkmcnt(0)')
    A('s_mul_i32 s42, s42, 1664525')
    A('s_add_u32 s42, s42, 1013904223')
    PQ = RB + 16
    for k in range(4):
        A(f'v_cvt_pk_bf16_f32 v{PQ+2*k}, v{ACC[2*k]}, v{ACC[2*k+1]}')
        A(f'v_mov_b32 v{PQ+2*k+1}, s42')
    A('v_and_b32 v5, 1, v0')
    A('v_lshlrev_b32 v5, 5, v5')
    A('s_lshl_b32 s6, s4, 11')
    A('s_lshl_b32 s7, s5, 6')
    A('s_add_u32 s7, s7, s6')
    A(f's_add_u32 s7, s7, {WS_HQ:#x}')
    A(f's_add_u32 s6, s6, {WS_HQ:#x}')
    A('s_mov_b64 exec, 3')
    A(f'buffer_store_dwordx4 v[{PQ}:{PQ+3}], v5, s[{SW}:{SW+3}], s7 offen sc1'); vm.issue('st')
    A(f'buffer_store_dwordx4 v[{PQ+4}:{PQ+7}], v5, s[{SW}:{SW+3}], s7 offen offset:16 sc1'); vm.issue('st')
    A('s_mov_b64 exec, -1')
    stamp(2)
    A('v_lshlrev_b32 v5, 5, v0')
    PL = RB + 24
    A(f'buffer_load_dwordx4 v[{PL}:{PL+3}], v5, s[{SW}:{SW+3}], s6 offen sc1'); vm.issue('poll')
    A(f'buffer_load_dwordx4 v[{PL+4}:{PL+7}], v5, s[{SW}:{SW+3}], s6 offen offset:16 sc1'); vm.issue('poll')
    A('s_barrier')
    A('s_lshr_b32 s8, s5, 3')
    A('s_lshl_b32 s8, s8, 3')
    A('s_add_u32 s8, s8, s4')
    A('s_and_b32 s9, s5, 7')
    A('s_lshl_b32 s10, s8, 3')
    A('s_add_u32 s10, s10, s9')
    A('s_cmp_lt_u32 s8, 28')
    A('s_cselect_b32 s11, 1, 0')
    A(f's_cselect_b32 s{SG+2}, {512*3584:#x}, 0')
    A(f's_cselect_b32 s{SU+2}, {512*3584:#x}, 0')
    A(f's_cselect_b32 s{SD+2}, {1792*1024:#x}, 0')
    A(f'buffer_load_dwordx4 v[{X}:{X+3}], v1, s[{SWR}:{SWR+3}], 0 offen'); vm.issue('wr')
    A('v_mul_u32_u24 v6, 3584, v0')
    A('s_lshl_b32 s12, s10, 4')
    for i in range(8):
        r = RA + 4 * i
        A(f'buffer_load_dwordx4 v[{r}:{r+3}], v6, s[{SG}:{SG+3}], s12 offen {wflags}'); vm.issue('g%d' % i)
        r = RA + 32 + 4 * i
        A(f'buffer_load_dwordx4 v[{r}:{r+3}], v6, s[{SU}:{SU+3}], s12 offen {wflags}'); vm.issue('u%d' % i)
        if i < 7: A(f's_add_u32 s12, s12, {64*3584}')
    WD = RB + 32
    A('s_lshl_b32 s12, s10, 13')
    A('s_add_u32 s13, s12, 4096')
    for i in range(8):
        r = WD + 4 * i
        A(f'buffer_load_dwordx4 v[{r}:{r+3}], v1, s[{SD}:{SD+3}], {"s12" if i < 4 else "s13"} offen offset:{(i%4)*1024} {wflags}'); vm.issue('d%d' % i)
    saveq = None
    vm.wait('poll')
    LAB('L_qcheck')
    A(f'v_xor_b32 v4, s42, v{PL+1}')
    A(f'v_xor_b32 v7, s42, v{PL+3}')
    A(f'v_xor_b32 v28, s42, v{PL+5}')
    A(f'v_xor_b32 v29, s42, v{PL+7}')
    A('v_or3_b32 v4, v4, v7, v28')
    A('v_or_b32 v4, v4, v29')
    A('v_cmp_ne_u32 vcc, 0, v4')
    A('s_cbranch_vccz L_qok')
    A('s_add_u32 s99, s99, 1')
    A(f's_cmp_gt_u32 s99, {POLL_LIMIT}')
    A('s_cbranch_scc1 L_qok')
    A('s_sleep 1')
    A(f'buffer_load_dwordx4 v[{PL}:{PL+3}], v5, s[{SW}:{SW+3}], s6 offen sc1')
    A(f'buffer_load_dwordx4 v[{PL+4}:{PL+7}], v5, s[{SW}:{SW+3}], s6 offen offset:16 sc1')
    A('s_waitcnt vmcnt(0)')
    A('s_branch L_qcheck')
    LAB('L_qok')
    A(f'v_mov_b32 v{PL+1}, v{PL+2}')
    A(f'v_mov_b32 v{PL+2}, v{PL+4}')
    A(f'v_mov_b32 v{PL+3}, v{PL+6}')
    A(f'ds_write_b128 v1, v[{PL}:{PL+3}] offset:{L_Q}')
    A('s_waitcnt lgkmcnt(0)')
    A('s_barrier')
    stamp(3)
    vm.wait('wr')
    for k in range(4):
        A(f'v_lshlrev_b32 v{Fv[2*k]}, 16, v{X+k}')
        A(f'v_and_b32 v{Fv[2*k+1]}, 0xffff0000, v{X+k}')
    A(f'v_mul_f32 v4, v{Fv[0]}, v{XN[0]}')
    for k in range(1, 8): A(f'v_fmac_f32 v4, v{Fv[k]}, v{XN[k]}')
    allreduce('v_add_f32', [4], [7], ALL6)
    rne([4], [7])
    A('v_mul_f32 v4, s43, v4')
    A('v_sub_f32 v4, 0, v4')
    A('v_exp_f32 v4, v4')
    A('v_add_f32 v4, 1.0, v4')
    A('v_rcp_f32 v4, v4')
    rne([4], [7])
    A('v_mov_b32 v28, v4')
    XR2 = RB
    A('v_lshlrev_b32 v4, 2, v0')
    for i in range(8):
        A(f'ds_read_b32 v{XR2+i}, v4 offset:{L_XN + i*256}')
    AG = list(range(RB + 8, RB + 16)); AU = list(range(RB + 16, RB + 24))
    for k in AG + AU: A(f'v_mov_b32 v{k}, 0')
    A('s_waitcnt lgkmcnt(0)')
    for i in range(8):
        vm.wait('u%d' % i)
        A(f'v_lshrrev_b32 v29, 16, v{XR2+i}')
        for dw in range(4):
            A(f'v_dot2c_f32_bf16 v{AG[2*dw]}, v{RA+4*i+dw}, v29')
            A(f'v_dot2c_f32_bf16 v{AG[2*dw+1]}, v{RA+4*i+dw}, v{XR2+i}')
            A(f'v_dot2c_f32_bf16 v{AU[2*dw]}, v{RA+32+4*i+dw}, v29')
            A(f'v_dot2c_f32_bf16 v{AU[2*dw+1]}, v{RA+32+4*i+dw}, v{XR2+i}')
    A('s_lshr_b32 s12, s5, 3')
    A('s_lshl_b32 s13, s4, 2')
    A('s_add_u32 s12, s12, s13')
    A('s_lshl_b32 s12, s12, 7')
    A('s_and_b32 s13, s5, 7')
    A('s_add_u32 s12, s12, s13')
    A('s_lshl_b32 s12, s12, 10')
    for k in range(16):
        r = RA + 4 * k
        A(f'buffer_load_dwordx4 v[{r}:{r+3}], v1, s[{SO}:{SO+3}], s12 offen {wflags}'); vm.issue('o%d' % k)
        if k < 15: A('s_add_u32 s12, s12, 8192')
    allreduce('v_add_f32', AG + AU, list(range(8, 24)), ALL6)
    rne(AG, [8, 9, 10, 11]); rne(AU, [8, 9, 10, 11])
    for k in range(8): A(f'v_mul_f32 v{8+k}, s43, v{AG[k]}')
    for k in range(8): A(f'v_sub_f32 v{8+k}, 0, v{8+k}')
    for k in range(8): A(f'v_exp_f32 v{8+k}, v{8+k}')
    for k in range(8): A(f'v_add_f32 v{8+k}, 1.0, v{8+k}')
    for k in range(8): A(f'v_rcp_f32 v{8+k}, v{8+k}')
    for k in range(8): A(f'v_mul_f32 v{AG[k]}, v{AG[k]}, v{8+k}')
    rne(AG, [8, 9, 10, 11])
    for k in range(8): A(f'v_mul_f32 v{AG[k]}, v{AG[k]}, v{AU[k]}')
    rne(AG, [8, 9, 10, 11])
    OUT = 8
    for c in range(8): A(f'v_mov_b32 v{OUT+2*c}, 0')
    for i in range(8):
        vm.wait('d%d' % i)
        A(f'v_lshrrev_b32 v29, 16, v{AG[i]}')
        for dw in range(4):
            A(f'v_dot2c_f32_bf16 v{OUT+4*dw}, v{WD+4*i+dw}, v29')
            A(f'v_dot2c_f32_bf16 v{OUT+4*dw+2}, v{WD+4*i+dw}, v{AG[i]}')
    for c in range(8): A(f'v_mul_f32 v{OUT+2*c}, v{OUT+2*c}, v28')
    for c in range(8): A(f'v_mov_b32 v{OUT+2*c+1}, s42')
    for kp in range(8):
        vm.wait('o%d' % (2 * kp + 1))
        for dw in range(4):
            A(f'v_perm_b32 v{RB+8*kp+2*dw}, v{RA+4*(2*kp+1)+dw}, v{RA+4*(2*kp)+dw}, s44')
            A(f'v_perm_b32 v{RB+8*kp+2*dw+1}, v{RA+4*(2*kp+1)+dw}, v{RA+4*(2*kp)+dw}, s45')
    A('v_lshrrev_b32 v4, 1, v0')
    A('v_lshlrev_b32 v5, 15, v4')
    A('v_and_b32 v6, 1, v0')
    A('v_lshl_add_u32 v5, v6, 6, v5')
    A('v_lshlrev_b32 v6, 9, v4')
    A('s_lshr_b32 s12, s5, 3')
    A('s_and_b32 s13, s5, 7')
    A('s_lshl_b32 s14, s4, 12')
    A('s_lshl_b32 s15, s12, 10')
    A('s_add_u32 s14, s14, s15')
    A('s_lshl_b32 s15, s13, 7')
    A('s_add_u32 s14, s14, s15')
    A(f's_add_u32 s14, s14, {WS_H1O:#x}')
    A('s_lshl_b32 s15, s4, 6')
    A('s_lshl_b32 s12, s12, 4')
    A('s_add_u32 s15, s15, s12')
    A(f's_add_u32 s15, s15, {WS_H1ML:#x}')
    A('v_lshlrev_b32 v7, 14, v0')
    A('s_lshl_b32 s12, s2, 4')
    A(f's_add_u32 s12, s12, {WS_H2:#x}')
    A('s_lshl_b32 s13, s2, 12')
    A(f's_add_u32 s13, s13, {WS_H2:#x}')
    A('v_lshlrev_b32 v29, 3, v0')
    A('s_barrier')
    stamp(4)
    G1 = RA
    LAB('L_h1poll')
    A(f'buffer_load_dwordx4 v[{G1+16}:{G1+19}], v6, s[{SW}:{SW+3}], s15 offen sc1')
    for e in range(4):
        A(f'buffer_load_dwordx4 v[{G1+4*e}:{G1+4*e+3}], v5, s[{SW}:{SW+3}], s14 offen offset:{16*e} sc1')
    A('s_waitcnt vmcnt(0)')
    tags = [G1 + 2 * k + 1 for k in range(10)]
    TT = list(range(G1 + 20, G1 + 30))
    for k in range(10): A(f'v_xor_b32 v{TT[k]}, s42, v{tags[k]}')
    A(f'v_or3_b32 v4, v{TT[0]}, v{TT[1]}, v{TT[2]}')
    A(f'v_or3_b32 v29, v{TT[3]}, v{TT[4]}, v{TT[5]}')
    A(f'v_or3_b32 v4, v4, v{TT[6]}, v{TT[7]}')
    A(f'v_or3_b32 v29, v29, v{TT[8]}, v{TT[9]}')
    A('v_or_b32 v4, v4, v29')
    A('v_cmp_ne_u32 vcc, 0, v4')
    A('s_cbranch_vccz L_h1ok')
    A('s_add_u32 s99, s99, 1')
    A(f's_cmp_gt_u32 s99, {POLL_LIMIT}')
    A('s_cbranch_scc1 L_h1ok')
    A('s_sleep 1')
    A('s_branch L_h1poll')
    LAB('L_h1ok')
    stamp(5)
    mP = G1 + 16; lP = G1 + 18
    A(f'v_mov_b32 v4, v{mP}')
    allreduce('v_max_f32', [4], [29], PAR5)
    A(f'v_sub_f32 v4, v{mP}, v4')
    A('v_mul_f32 v4, s43, v4')
    A('v_exp_f32 v4, v4')
    vals = [G1 + 2 * k for k in range(8)] + [lP]
    for r in vals: A(f'v_mul_f32 v{r}, v{r}, v4')
    allreduce('v_add_f32', vals, list(range(G1 + 20, G1 + 29)), PAR5)
    A(f'v_rcp_f32 v4, v{lP}')
    for k in range(8): A(f'v_mul_f32 v{G1+30+k}, v{vals[k]}, v4')
    for k in range(8): A(f'v_fma_f32 v{vals[k]}, -v{G1+30+k}, v{lP}, v{vals[k]}')
    for k in range(8): A(f'v_fma_f32 v{vals[k]}, v{vals[k]}, v4, v{G1+30+k}')
    for k in range(4): A(f'v_cvt_pk_bf16_f32 v{G1+20+k}, v{vals[2*k]}, v{vals[2*k+1]}')
    for k in range(4):
        A(f'v_readlane_b32 s{60+k}, v{G1+20+k}, 0')
        A(f'v_readlane_b32 s{64+k}, v{G1+20+k}, 1')
    for kp in range(8):
        for c in range(8):
            A(f'v_dot2c_f32_bf16 v{OUT+2*c}, s{60+kp}, v{RB+8*kp+c}')
    for e in range(4):
        A(f'buffer_store_dwordx4 v[{OUT+4*e}:{OUT+4*e+3}], v7, s[{SW}:{SW+3}], s12 offen sc1')
        if e < 3: A('s_add_u32 s12, s12, 4096')
    A('s_lshl_b32 s14, s2, 3')
    A('v_mov_b32 v4, s14')
    A(f'ds_read_b64 v[30:31], v4 offset:{L_BASE}')
    LAB('L_h2poll')
    for e in range(4):
        A(f'buffer_load_dwordx4 v[{G1+4*e}:{G1+4*e+3}], v1, s[{SW}:{SW+3}], s13 offen offset:{1024*e} sc1')
    A('s_waitcnt vmcnt(0)')
    tags = [G1 + 2 * k + 1 for k in range(8)]
    for k in range(8): A(f'v_xor_b32 v{TT[k]}, s42, v{tags[k]}')
    A(f'v_or3_b32 v4, v{TT[0]}, v{TT[1]}, v{TT[2]}')
    A(f'v_or3_b32 v29, v{TT[3]}, v{TT[4]}, v{TT[5]}')
    A(f'v_or3_b32 v4, v4, v{TT[6]}, v{TT[7]}')
    A('v_or_b32 v4, v4, v29')
    A('v_cmp_ne_u32 vcc, 0, v4')
    A('s_cbranch_vccz L_h2ok')
    A('s_add_u32 s99, s99, 1')
    A(f's_cmp_gt_u32 s99, {POLL_LIMIT}')
    A('s_cbranch_scc1 L_h2ok')
    A('s_sleep 1')
    A('s_branch L_h2poll')
    LAB('L_h2ok')
    A(f'v_add_f32 v{G1}, v{G1}, v{G1+4}')
    A(f'v_add_f32 v{G1+2}, v{G1+2}, v{G1+6}')
    A(f'v_add_f32 v{G1+8}, v{G1+8}, v{G1+12}')
    A(f'v_add_f32 v{G1+10}, v{G1+10}, v{G1+14}')
    A(f'v_add_f32 v{G1}, v{G1}, v{G1+8}')
    A(f'v_add_f32 v{G1+2}, v{G1+2}, v{G1+10}')
    allreduce('v_add_f32', [G1, G1 + 2], [G1 + 20, G1 + 21], ALL6)
    A('s_waitcnt lgkmcnt(0)')
    A(f'v_add_f32 v{G1}, v{G1}, v30')
    A(f'v_add_f32 v{G1+2}, v{G1+2}, v31')
    A(f'v_cvt_pk_bf16_f32 v4, v{G1}, v{G1+2}')
    A('s_lshl_b32 s14, s2, 2')
    A('v_mov_b32 v5, s14')
    A('s_mov_b64 exec, 1')
    A(f'buffer_store_dword v4, v5, s[{SOUT}:{SOUT+3}], 0 offen')
    A('s_cmp_lg_u32 s2, 0')
    A('s_cbranch_scc1 L_nogen')
    A('v_mov_b32 v6, s42')
    A('v_mov_b32 v7, 0')
    A(f'buffer_store_dword v6, v7, s[{SW}:{SW+3}], 0 offen sc1')
    LAB('L_nogen')
    if stamps:
        stamp(6)
        A('s_waitcnt lgkmcnt(0)')
        A('v_mov_b32 v8, s84'); A('v_mov_b32 v9, s85'); A('v_mov_b32 v10, s96'); A('v_mov_b32 v11, s97')
        A('s_lshl_b32 s14, s2, 4')
        A(f's_add_u32 s14, s14, {WS_STAMP:#x}')
        A('v_mov_b32 v7, 0')
        A(f'buffer_store_dwordx4 v[8:11], v7, s[{SW}:{SW+3}], s14 offen')
        A('s_lshl_b32 s14, s2, 6')
        A(f's_add_u32 s14, s14, {WS_STAMP+0x10000:#x}')
        for k in range(0, 7, 2):
            A(f'v_mov_b32 v12, s{84+2*k}'); A(f'v_mov_b32 v13, s{85+2*k}')
            A(f'v_mov_b32 v14, s{86+2*k}'); A(f'v_mov_b32 v15, s{87+2*k}')
            A(f'buffer_store_dwordx4 v[12:15], v7, s[{SW}:{SW+3}], s14 offen offset:{8*k}')
            A('s_nop 1')
    LAB('L_end')
    A('s_endpgm')

    body = pad(L)
    check_loops(body)
    out = [HEADER.rstrip('\n')]
    out.append('; Override launch geometry by editing the next line (default: block=256,')
    out.append(f'; @launch grid=(256,1,1) block=(576,1,1) lds={L_SIZE}')
    out.append('.amdgcn_target "amdgcn-amd-amdhsa--gfx950"')
    out.append('.text')
    out.append(f'.globl {NAME}')
    out.append('.p2align 8')
    out.append(f'.type {NAME},@function')
    out += body
    out.append('.section .rodata,"a"')
    out.append('.p2align 6')
    out.append(f'.amdhsa_kernel {NAME}')
    out.append('  .amdhsa_next_free_vgpr 160')
    out.append('  .amdhsa_next_free_sgpr 102')
    out.append('  .amdhsa_accum_offset 160')
    out.append('  .amdhsa_group_segment_fixed_size 0')
    out.append('  .amdhsa_kernarg_size 104')
    out.append('  .amdhsa_user_sgpr_count 2')
    out.append('  .amdhsa_user_sgpr_kernarg_segment_ptr 1')
    out.append('  .amdhsa_system_sgpr_workgroup_id_x 1')
    out.append('.end_amdhsa_kernel')
    return '\n'.join(out) + '\n'

if __name__ == '__main__':
    open('k1s.s', 'w').write(gen(stamps=True))
    open('k1.s', 'w').write(gen(stamps=False))
```

```python
import sys
from asmlib import pad, check_loops, VM
NAME = 'parallel_sum__gqa_block_cached__moe_arch_mod__decode_kernel'

WS_GEN = 0x0
WS_HQ = 0x10000
WS_H1O = 0x100000
WS_H1ML = 0x200000
WS_H2 = 0x300000
WS_STAMP = 0x10000000
L_PO = 0x0000
L_ML = 0x4000
L_Q = 0x4100
L_XN = 0x4800
L_BASE = 0x5000
L_SIZE = 0x5800

POLL_LIMIT = 20000
LOG2E = 0x3fb8aa3b
SCALE = 0x3db504f3

HEADER = open('parallel_sum__gqa_block_cached__moe_arch_mod__decode.s.ref').read().split('; Override launch')[0]

def gen(stamps=False, kflags='nt', wflags='nt', wqflags=None):
    if wqflags is None: wqflags = wflags
    L = []
    def A(s): L.append('  ' + s)
    def LAB(s): L.append(s + ':')
    def C(s): L.append('  ; ' + s)

    def srd(q, lo, hi, n):
        A(f's_mov_b32 s{q}, s{lo}'); A(f's_mov_b32 s{q+1}, s{hi}')
        A(f's_mov_b32 s{q+2}, {n:#x}'); A(f's_mov_b32 s{q+3}, 0x20000')

    def allreduce(op, regs, tmps, steps):
        for st in steps:
            if st.startswith('ror'):
                n = int(st[3:])
                for r in regs:
                    A(f'{op}_dpp v{r}, v{r}, v{r} row_ror:{n} row_mask:0xf bank_mask:0xf')
            else:
                sw = 'v_permlane16_swap_b32' if st == 'x16' else 'v_permlane32_swap_b32'
                for r, t in zip(regs, tmps): A(f'v_mov_b32 v{t}, v{r}')
                for r, t in zip(regs, tmps): A(f'{sw} v{t}, v{r}')
                for r, t in zip(regs, tmps): A(f'{op} v{r}, v{r}, v{t}')

    def rne(regs, tmps):
        for k in range(0, len(regs), 2):
            a = regs[k]; b = regs[k + 1] if k + 1 < len(regs) else a
            A(f'v_cvt_pk_bf16_f32 v{tmps[k//2]}, v{a}, v{b}')
        for k in range(0, len(regs), 2):
            a = regs[k]
            A(f'v_lshlrev_b32 v{a}, 16, v{tmps[k//2]}')
            if k + 1 < len(regs):
                A(f'v_and_b32 v{regs[k+1]}, 0xffff0000, v{tmps[k//2]}')

    ALL6 = ['ror1', 'ror2', 'ror4', 'ror8', 'x16', 'x32']
    PAR5 = ['ror2', 'ror4', 'ror8', 'x16', 'x32']

    def stamp(k):
        if stamps:
            A(f's_memrealtime s[{84+2*k}:{85+2*k}]')

    L.append(f'{NAME}:')
    A('s_cmp_ge_u32 s2, 256')
    A('s_cbranch_scc1 L_end')
    A('s_load_dwordx16 s[16:31], s[0:1], 0')
    A('s_load_dwordx8 s[32:39], s[0:1], 64')
    A('s_load_dwordx2 s[40:41], s[0:1], 96')
    stamp(0)
    A('v_lshrrev_b32 v1, 6, v0')
    A('v_and_b32 v0, 63, v0')
    A('v_readfirstlane_b32 s3, v1')
    A('s_and_b32 s4, s2, 7')
    A('s_lshr_b32 s5, s2, 3')
    A(f's_mov_b32 s43, {LOG2E:#x}')
    A('s_mov_b32 s44, 0x05040100')
    A('s_mov_b32 s45, 0x07060302')
    A(f's_mov_b32 s46, {SCALE:#x}')
    A(f's_mov_b32 s47, {SCALE:#x}')
    A('s_cmp_eq_u32 s3, 0')
    A('s_cbranch_scc1 L_service')

    SK, SV, SW = 48, 52, 56
    vK, vV, vM, vML, vL, vAl = 1, 2, 3, 4, 5, 6
    T0, T1, T2, T3 = 8, 9, 10, 11
    Q, P, S, F, O, KR, KB, VR = 12, 20, 24, 24, 40, 72, 104, 136
    C('stream wave')
    A('s_sub_u32 s3, s3, 1')
    A(f'v_and_b32 v{vK}, 7, v0')
    A(f'v_lshlrev_b32 v{vK}, 8, v{vK}')
    A(f'v_bfe_u32 v{T0}, v0, 3, 1')
    A(f'v_lshl_add_u32 v{vK}, v{T0}, 6, v{vK}')
    A(f'v_lshrrev_b32 v{T0}, 4, v0')
    A(f'v_lshl_add_u32 v{vK}, v{T0}, 4, v{vK}')
    A(f'v_and_b32 v{vV}, 15, v0')
    A(f'v_lshlrev_b32 v{vV}, 4, v{vV}')
    A(f'v_bfe_u32 v{T0}, v0, 4, 1')
    A(f'v_lshl_add_u32 v{vV}, v{T0}, 10, v{vV}')
    A(f'v_lshrrev_b32 v{T0}, 5, v0')
    A(f'v_lshl_add_u32 v{vV}, v{T0}, 12, v{vV}')
    A('s_lshl_b32 s6, s5, 3')
    A('s_add_u32 s6, s6, s3')
    A('s_lshl_b32 s6, s6, 13')
    A('s_lshl_b32 s7, s4, 24')
    A('s_add_u32 s6, s6, s7')
    A('s_add_u32 s7, s6, 4096')
    A('s_waitcnt lgkmcnt(0)')
    A('s_load_dword s42, s[40:41], 0')
    srd(SK, 18, 19, 0x8000000)
    srd(SV, 20, 21, 0x8000000)
    srd(SW, 40, 41, 0x10100000 if stamps else 0x400000)

    def kloads(base=None):
        if base is None: base = KR
        for T in range(4):
            for j in range(2):
                r = base + (T * 2 + j) * 4
                so = 's6' if T < 2 else 's7'
                A(f'buffer_load_dwordx4 v[{r}:{r+3}], v{vK}, s[{SK}:{SK+3}], {so} offen offset:{(T%2)*2048 + j*128} {kflags}')
    def vloads():
        for j8 in range(8):
            r = VR + j8 * 4
            A(f'buffer_load_dwordx4 v[{r}:{r+3}], v{vV}, s[{SV}:{SV+3}], s6 offen offset:{(j8//4)*2048 + (j8%4)*256} {kflags}')

    A('s_barrier')
    kloads()
    vloads()
    A('s_add_u32 s6, s6, 0x200000')
    A('s_add_u32 s7, s7, 0x200000')
    for k in range(32): A(f'v_mov_b32 v{O+k}, 0')
    A(f'v_mov_b32 v{vM}, 0xff800000')
    A(f'v_mov_b32 v{vML}, 0xff800000')
    A(f'v_mov_b32 v{vL}, 0')
    A(f'v_and_b32 v{T0}, 3, v0')
    A(f'v_lshlrev_b32 v{T0}, 8, v{T0}')
    A(f'v_bfe_u32 v{T1}, v0, 3, 1')
    A(f'v_lshl_add_u32 v{T0}, v{T1}, 6, v{T0}')
    A(f'v_lshrrev_b32 v{T1}, 4, v0')
    A(f'v_lshl_add_u32 v{T0}, v{T1}, 4, v{T0}')
    A('s_mov_b32 s8, 0')
    A('s_waitcnt vmcnt(8)')
    A('s_barrier')
    A('s_barrier')
    kloads(KB)
    A('s_sub_u32 s6, s6, 0x200000')
    A('s_sub_u32 s7, s7, 0x200000')
    A('s_barrier')
    A(f'ds_read_b128 v[{Q}:{Q+3}], v{T0} offset:{L_Q}')
    A(f'ds_read_b128 v[{Q+4}:{Q+7}], v{T0} offset:{L_Q+128}')
    A('s_waitcnt lgkmcnt(0)')
    LAB('L_loop')
    A('s_add_u32 s6, s6, 0x200000')
    A('s_add_u32 s7, s7, 0x200000')
    A('s_cmp_lt_u32 s8, 7')
    A(f's_cselect_b32 s{SK+2}, 0x8000000, 0')
    A(f's_cselect_b32 s{SV+2}, 0x8000000, 0')
    A('s_cmp_eq_u32 s8, 1')
    A('s_waitcnt vmcnt(8)')
    A('s_cbranch_scc0 L_nocopy')
    for k in range(32): A(f'v_mov_b32 v{KR+k}, v{KB+k}')
    LAB('L_nocopy')
    for T in range(4):
        A(f'v_mfma_f32_16x16x32_bf16 v[{S+4*T}:{S+4*T+3}], v[{KR+8*T}:{KR+8*T+3}], v[{Q}:{Q+3}], 0')
    for T in range(4):
        A(f'v_mfma_f32_16x16x32_bf16 v[{S+4*T}:{S+4*T+3}], v[{KR+8*T+4}:{KR+8*T+7}], v[{Q+4}:{Q+7}], v[{S+4*T}:{S+4*T+3}]')
    A('s_cmp_eq_u32 s8, 0')
    A('s_cbranch_scc1 L_nok')
    kloads()
    LAB('L_nok')
    A('s_nop 5')
    for r in range(4):
        A(f'v_permlane32_swap_b32 v{S+r}, v{S+8+r}')
        A(f'v_permlane32_swap_b32 v{S+4+r}, v{S+12+r}')
    for r in range(4):
        A(f'v_add_f32_dpp v{S+r}, v{S+8+r}, v{S+r} row_ror:8 row_mask:0xf bank_mask:0xf')
        A(f'v_add_f32_dpp v{S+4+r}, v{S+12+r}, v{S+4+r} row_ror:8 row_mask:0xf bank_mask:0xf')
    Z = list(range(S, S + 8)); TT = list(range(S + 8, S + 12))
    rne(Z, TT)
    for k in range(0, 8, 2):
        A(f'v_pk_mul_f32 v[{Z[k]}:{Z[k]+1}], v[{Z[k]}:{Z[k]+1}], s[46:47]')
    rne(Z, TT)
    A(f'v_max3_f32 v{T0}, v{Z[0]}, v{Z[1]}, v{Z[2]}')
    A(f'v_max3_f32 v{T1}, v{Z[3]}, v{Z[4]}, v{Z[5]}')
    A(f'v_max3_f32 v{T0}, v{Z[6]}, v{Z[7]}, v{T0}')
    A(f'v_max_f32 v{T0}, v{T0}, v{T1}')
    allreduce('v_max_f32', [T0], [T1], ['x16', 'x32'])
    A(f'v_max_f32 v{vM}, v{vM}, v{T0}')
    A(f'v_mul_f32 v{T1}, s43, v{vM}')
    A(f'v_sub_f32 v{T0}, v{vML}, v{T1}')
    A(f'v_mov_b32 v{vML}, v{T1}')
    A(f'v_exp_f32 v{vAl}, v{T0}')
    for k in range(8):
        A(f'v_fma_f32 v{Z[k]}, v{Z[k]}, s43, -v{vML}')
    for k in range(8):
        A(f'v_exp_f32 v{Z[k]}, v{Z[k]}')
    for k in range(16):
        A(f'v_pk_mul_f32 v[{O+2*k}:{O+2*k+1}], v[{O+2*k}:{O+2*k+1}], v[{vAl}:{vAl+1}] op_sel_hi:[1,0]')
    for k in range(4):
        A(f'v_cvt_pk_bf16_f32 v{P+k}, v{Z[2*k]}, v{Z[2*k+1]}')
    A(f'v_pk_add_f32 v[{Z[0]}:{Z[1]}], v[{Z[0]}:{Z[1]}], v[{Z[2]}:{Z[3]}]')
    A(f'v_pk_add_f32 v[{Z[4]}:{Z[5]}], v[{Z[4]}:{Z[5]}], v[{Z[6]}:{Z[7]}]')
    A(f'v_pk_add_f32 v[{Z[0]}:{Z[1]}], v[{Z[0]}:{Z[1]}], v[{Z[4]}:{Z[5]}]')
    A(f'v_add_f32 v{Z[0]}, v{Z[0]}, v{Z[1]}')
    A(f'v_fma_f32 v{vL}, v{vL}, v{vAl}, v{Z[0]}')
    A('s_waitcnt vmcnt(8)')
    for t in range(4):
        fb = F + (t % 2) * 8
        for jj in range(4):
            A(f'v_perm_b32 v{fb+jj}, v{VR+(2*jj+1)*4+t}, v{VR+(2*jj)*4+t}, s44')
        for jj in range(4):
            A(f'v_perm_b32 v{fb+4+jj}, v{VR+(2*jj+1)*4+t}, v{VR+(2*jj)*4+t}, s45')
        o0 = O + (2 * t) * 4; o1 = O + (2 * t + 1) * 4
        A(f'v_mfma_f32_16x16x32_bf16 v[{o0}:{o0+3}], v[{fb}:{fb+3}], v[{P}:{P+3}], v[{o0}:{o0+3}]')
        A(f'v_mfma_f32_16x16x32_bf16 v[{o1}:{o1+3}], v[{fb+4}:{fb+7}], v[{P}:{P+3}], v[{o1}:{o1+3}]')
    vloads()
    A('s_add_u32 s8, s8, 1')
    A('s_cmp_lt_u32 s8, 8')
    A('s_cbranch_scc1 L_loop')
    allreduce('v_add_f32', [vL], [T1], ['x16', 'x32'])
    A(f'v_and_b32 v{T0}, 3, v0')
    A(f'v_lshlrev_b32 v{T0}, 6, v{T0}')
    A(f'v_lshrrev_b32 v{T1}, 4, v0')
    A(f'v_lshl_add_u32 v{T0}, v{T1}, 4, v{T0}')
    A('s_lshl_b32 s9, s3, 11')
    A(f'v_add_u32 v{T0}, s9, v{T0}')
    A(f'v_and_b32 v{T2}, 3, v0')
    A(f'v_lshlrev_b32 v{T2}, 3, v{T2}')
    A('s_lshl_b32 s9, s3, 5')
    A(f'v_add_u32 v{T2}, s9, v{T2}')
    A(f'v_mov_b32 v{S}, v{vM}')
    A(f'v_mov_b32 v{S+1}, v{vL}')
    A('s_mov_b32 exec_lo, 0x000f000f')
    A('s_mov_b32 exec_hi, 0x000f000f')
    for i in range(8):
        A(f'ds_write_b128 v{T0}, v[{O+4*i}:{O+4*i+3}] offset:{L_PO + i*256}')
    A('s_mov_b32 exec_lo, 0xf')
    A('s_mov_b32 exec_hi, 0')
    A(f'ds_write_b64 v{T2}, v[{S}:{S+1}] offset:{L_ML}')
    A('s_mov_b64 exec, -1')
    A('s_waitcnt lgkmcnt(0)')
    A('s_barrier')
    A('s_cmp_ge_u32 s3, 4')
    A('s_cbranch_scc1 L_end')
    A(f'v_lshlrev_b32 v{T0}, 3, v0')
    A('s_lshl_b32 s9, s3, 9')
    A(f'v_add_u32 v{T0}, s9, v{T0}')
    A(f'v_bfe_u32 v{T1}, v0, 3, 2')
    A(f'v_lshlrev_b32 v{T2}, 3, v{T1}')
    MO = 56; MM = 72
    for w in range(8):
        A(f'ds_read_b64 v[{MM+2*w}:{MM+2*w+1}], v{T2} offset:{L_ML + w*32}')
    for w in range(8):
        A(f'ds_read_b64 v[{MO+2*w}:{MO+2*w+1}], v{T0} offset:{L_PO + w*2048}')
    A(f'v_lshlrev_b32 v{T1}, 10, v{T1}')
    A(f'v_and_b32 v{T3}, 7, v0')
    A(f'v_lshl_add_u32 v{T1}, v{T3}, 4, v{T1}')
    A(f'v_lshrrev_b32 v{T3}, 5, v0')
    A(f'v_lshl_add_u32 v{T1}, v{T3}, 7, v{T1}')
    A('s_lshl_b32 s9, s3, 8')
    A('s_lshl_b32 s10, s2, 12')
    A('s_add_u32 s9, s9, s10')
    A(f's_add_u32 s9, s9, {WS_H1O:#x}')
    A('s_mul_i32 s42, s42, 1664525')
    A('s_add_u32 s42, s42, 1013904223')
    A('s_waitcnt lgkmcnt(8)')
    mm = [MM + 2 * w for w in range(8)]
    A(f'v_max3_f32 v{S}, v{mm[0]}, v{mm[1]}, v{mm[2]}')
    A(f'v_max3_f32 v{S+1}, v{mm[3]}, v{mm[4]}, v{mm[5]}')
    A(f'v_max3_f32 v{S}, v{mm[6]}, v{mm[7]}, v{S}')
    A(f'v_max_f32 v{S}, v{S}, v{S+1}')
    for w in range(8):
        A(f'v_sub_f32 v{mm[w]}, v{mm[w]}, v{S}')
    for w in range(8):
        A(f'v_mul_f32 v{mm[w]}, s43, v{mm[w]}')
    for w in range(8):
        A(f'v_exp_f32 v{mm[w]}, v{mm[w]}')
    A(f'v_mul_f32 v{S+2}, v{mm[0]}, v{mm[0]+1}')
    for w in range(1, 8):
        A(f'v_fmac_f32 v{S+2}, v{mm[w]}, v{mm[w]+1}')
    A('s_waitcnt lgkmcnt(0)')
    A(f'v_mul_f32 v{S+4}, v{mm[0]}, v{MO}')
    A(f'v_mul_f32 v{S+6}, v{mm[0]}, v{MO+1}')
    for w in range(1, 8):
        A(f'v_fmac_f32 v{S+4}, v{mm[w]}, v{MO+2*w}')
        A(f'v_fmac_f32 v{S+6}, v{mm[w]}, v{MO+2*w+1}')
    A(f'v_mov_b32 v{S+5}, s42')
    A(f'v_mov_b32 v{S+7}, s42')
    A(f'buffer_store_dwordx4 v[{S+4}:{S+7}], v{T1}, s[{SW}:{SW+3}], s9 offen sc1')
    A('s_cmp_lg_u32 s3, 0')
    A('s_cbranch_scc1 L_end')
    A(f'v_mov_b32 v{S+1}, s42')
    A(f'v_mov_b32 v{S+3}, s42')
    A(f'v_bfe_u32 v{T1}, v0, 3, 2')
    A(f'v_lshlrev_b32 v{T1}, 4, v{T1}')
    A('s_lshl_b32 s9, s2, 6')
    A(f's_add_u32 s9, s9, {WS_H1ML:#x}')
    A('s_mov_b32 exec_lo, 0x01010101')
    A('s_mov_b32 exec_hi, 0')
    A(f'buffer_store_dwordx4 v[{S}:{S+3}], v{T1}, s[{SW}:{SW+3}], s9 offen sc1')
    A('s_endpgm')

    LAB('L_service')
    SX, SWQ, SW, SWR, SG, SU, SD, SO, SOUT = 48, 52, 56, 60, 64, 68, 72, 76, 80
    vm = VM(lambda s: L.append(s))
    RA, RB = 32, 96
    X = 24; Fv = list(range(8, 16)); XN = list(range(16, 24))
    A('s_setprio 3')
    A('s_mov_b32 s99, 0')
    A('v_lshlrev_b32 v1, 4, v0')
    A('v_lshrrev_b32 v2, 3, v0')
    A('v_lshlrev_b32 v2, 13, v2')
    A('v_and_b32 v3, 7, v0')
    A('v_lshl_add_u32 v2, v3, 4, v2')
    A('s_and_b32 s98, s5, 7')
    A('s_lshr_b32 s97, s5, 3')
    A('s_lshl_b32 s6, s4, 10')
    A('s_lshl_b32 s7, s98, 7')
    A('s_add_u32 s6, s6, s7')
    A('s_lshl_b32 s7, s97, 20')
    A('s_add_u32 s6, s6, s7')
    A('s_waitcnt lgkmcnt(0)')
    A('s_load_dword s42, s[40:41], 0')
    srd(SX, 16, 17, 1024)
    srd(SWQ, 22, 23, 512 * 8192)
    A(f'buffer_load_dwordx4 v[{X}:{X+3}], v1, s[{SX}:{SX+3}], 0 offen'); vm.issue('x')
    for i in range(16):
        r = RA + 4 * i
        A(f'buffer_load_dwordx4 v[{r}:{r+3}], v2, s[{SWQ}:{SWQ+3}], s6 offen {wqflags}'); vm.issue('wq%d' % i)
        if i < 15: A('s_add_u32 s6, s6, 0x10000')
    A('s_barrier')
    srd(SW, 40, 41, 0x10100000 if stamps else 0x400000)
    srd(SWR, 28, 29, 1024)
    srd(SG, 30, 31, 512 * 3584)
    srd(SU, 32, 33, 512 * 3584)
    srd(SD, 34, 35, 1792 * 1024)
    srd(SO, 24, 25, 4096 * 1024)
    srd(SOUT, 36, 37, 1024)
    vm.wait('x')
    for k in range(4):
        A(f'v_lshlrev_b32 v{Fv[2*k]}, 16, v{X+k}')
        A(f'v_and_b32 v{Fv[2*k+1]}, 0xffff0000, v{X+k}')
    A(f'v_add_f32 v4, v{Fv[0]}, v{Fv[1]}')
    for k in range(2, 8): A(f'v_add_f32 v4, v4, v{Fv[k]}')
    allreduce('v_add_f32', [4], [5], ALL6)
    A('v_mul_f32 v4, 0x3b000000, v4')
    for k in range(8): A(f'v_sub_f32 v{XN[k]}, v{Fv[k]}, v4')
    A(f'v_mul_f32 v6, v{XN[0]}, v{XN[0]}')
    for k in range(1, 8): A(f'v_fmac_f32 v6, v{XN[k]}, v{XN[k]}')
    allreduce('v_add_f32', [6], [5], ALL6)
    A('v_mul_f32 v6, 0x3b000000, v6')
    rne([4, 6], [5])
    A('v_add_f32 v6, 0x3727c5ac, v6')
    rne([6], [5])
    A('v_sqrt_f32 v6, v6')
    rne([6], [5])
    A('v_rcp_f32 v7, v6')
    for k in range(8): A(f'v_sub_f32 v{XN[k]}, v{Fv[k]}, v4')
    rne(XN, [28, 29, 30, 31])
    for k in range(8):
        A(f'v_mul_f32 v{RB+k}, v{XN[k]}, v7')
    for k in range(8):
        A(f'v_fma_f32 v{XN[k]}, -v{RB+k}, v6, v{XN[k]}')
    for k in range(8):
        A(f'v_fma_f32 v{XN[k]}, v{XN[k]}, v7, v{RB+k}')
    rne(XN, [28, 29, 30, 31])
    A('v_lshlrev_b32 v4, 5, v0')
    A(f'ds_write_b128 v4, v[{XN[0]}:{XN[3]}] offset:{L_XN}')
    A(f'ds_write_b128 v4, v[{XN[4]}:{XN[7]}] offset:{L_XN+16}')
    for k in range(8): A(f'v_add_f32 v{Fv[k]}, v{Fv[k]}, v{XN[k]}')
    A(f'ds_write_b128 v4, v[{Fv[0]}:{Fv[3]}] offset:{L_BASE}')
    A(f'ds_write_b128 v4, v[{Fv[4]}:{Fv[7]}] offset:{L_BASE+16}')
    A('v_lshrrev_b32 v5, 3, v0')
    A('v_lshlrev_b32 v5, 2, v5')
    A('s_lshl_b32 s7, s97, 9')
    A('v_add_u32 v5, s7, v5')
    A('s_waitcnt lgkmcnt(0)')
    XR = RB
    for i in range(16):
        A(f'ds_read_b32 v{XR+i}, v5 offset:{L_XN + i*32}')
    ACC = Fv
    for k in range(8): A(f'v_mov_b32 v{ACC[k]}, 0')
    A('s_waitcnt lgkmcnt(0)')
    stamp(1)
    for i in range(16):
        vm.wait('wq%d' % i)
        A(f'v_lshrrev_b32 v28, 16, v{XR+i}')
        for dw in range(4):
            A(f'v_dot2c_f32_bf16 v{ACC[2*dw]}, v{RA+4*i+dw}, v28')
            A(f'v_dot2c_f32_bf16 v{ACC[2*dw+1]}, v{RA+4*i+dw}, v{XR+i}')
    allreduce('v_add_f32', ACC, list(range(RB + 16, RB + 24)), ['ror8', 'x16', 'x32'])
    A('s_waitcnt lgkmcnt(0)')
    A('s_mul_i32 s42, s42, 1664525')
    A('s_add_u32 s42, s42, 1013904223')
    A('s_or_b32 s9, s42, 0x01010101')
    for k in range(4):
        A(f's_bfe_u32 s{92+k}, s9, {(8 << 16) | (8 * k):#x}')
    PQ = RB + 16
    A('v_and_b32 v5, 8, v0')
    A('v_cmp_ne_u32 vcc, 0, v5')
    for k in range(4):
        A(f'v_cndmask_b32 v{PQ+k}, v{ACC[k]}, v{ACC[4+k]}, vcc')
    for k in range(4):
        A(f'v_and_b32 v{PQ+k}, 0xffffff00, v{PQ+k}')
    for k in range(4):
        A(f'v_or_b32 v{PQ+k}, s{92+k}, v{PQ+k}')
    A('v_and_b32 v6, 7, v0')
    A('v_lshlrev_b32 v6, 5, v6')
    A('v_lshl_add_u32 v5, v5, 1, v6')
    A('s_lshl_b32 s6, s4, 13')
    A(f's_add_u32 s6, s6, {WS_HQ:#x}')
    A('s_lshl_b32 s7, s97, 11')
    A('s_lshl_b32 s9, s98, 8')
    A('s_add_u32 s7, s7, s9')
    A('s_add_u32 s7, s7, s6')
    A('s_mov_b64 exec, 0xffff')
    A(f'buffer_store_dwordx4 v[{PQ}:{PQ+3}], v5, s[{SW}:{SW+3}], s7 offen sc1'); vm.issue('st')
    A('s_mov_b64 exec, -1')
    stamp(2)
    A('v_lshlrev_b32 v5, 5, v0')
    A('s_add_u32 s7, s6, 4096')
    PL = RA
    def qpoll(track):
        for r in range(4):
            for hf in range(2):
                d = PL + 8 * r + 4 * hf
                A(f'buffer_load_dwordx4 v[{d}:{d+3}], v5, s[{SW}:{SW+3}], {"s6" if r < 2 else "s7"} offen offset:{(r%2)*2048 + hf*16} sc1')
                if track: vm.issue('poll')
    A('s_barrier')
    qpoll(True)
    A('s_barrier')
    vm.wait('poll')
    LAB('L_qcheck')
    for c in range(2):
        A(f'v_mov_b32 v{28+c}, 0')
    for k in range(32):
        A(f'v_msad_u8 v{28+(k%2)}, v{PL+k}, s{92+(k%4)}, v{28+(k%2)}')
    A('v_or_b32 v4, v28, v29')
    A('v_cmp_ne_u32 vcc, 0, v4')
    A('s_cbranch_vccz L_qok')
    A('s_add_u32 s99, s99, 1')
    A(f's_cmp_gt_u32 s99, {POLL_LIMIT}')
    A('s_cbranch_scc1 L_qok')
    A('s_sleep 1')
    qpoll(False)
    A('s_waitcnt vmcnt(0)')
    A('s_branch L_qcheck')
    LAB('L_qok')
    if stamps: A('s_mov_b32 s100, s99')
    for k in range(32):
        A(f'v_and_b32 v{PL+k}, 0xffffff00, v{PL+k}')
    for k in range(8):
        A(f'v_add_f32 v{PL+k}, v{PL+k}, v{PL+8+k}')
        A(f'v_add_f32 v{PL+16+k}, v{PL+16+k}, v{PL+24+k}')
    for k in range(8):
        A(f'v_add_f32 v{PL+k}, v{PL+k}, v{PL+16+k}')
    for k in range(4):
        A(f'v_cvt_pk_bf16_f32 v{PL+8+k}, v{PL+2*k}, v{PL+2*k+1}')
    A(f'ds_write_b128 v1, v[{PL+8}:{PL+11}] offset:{L_Q}')
    A('s_waitcnt lgkmcnt(0)')
    A('s_barrier')
    stamp(3)
    A('s_lshr_b32 s8, s5, 3')
    A('s_lshl_b32 s8, s8, 3')
    A('s_add_u32 s8, s8, s4')
    A('s_and_b32 s9, s5, 7')
    A('s_lshl_b32 s10, s8, 3')
    A('s_add_u32 s10, s10, s9')
    A('s_cmp_lt_u32 s8, 28')
    A('s_cselect_b32 s11, 1, 0')
    A(f's_cselect_b32 s{SG+2}, {512*3584:#x}, 0')
    A(f's_cselect_b32 s{SU+2}, {512*3584:#x}, 0')
    A(f's_cselect_b32 s{SD+2}, {1792*1024:#x}, 0')
    A(f'buffer_load_dwordx4 v[{X}:{X+3}], v1, s[{SWR}:{SWR+3}], 0 offen'); vm.issue('wr')
    A('v_mul_u32_u24 v6, 3584, v0')
    A('s_lshl_b32 s12, s10, 4')
    for i in range(8):
        r = RA + 4 * i
        A(f'buffer_load_dwordx4 v[{r}:{r+3}], v6, s[{SG}:{SG+3}], s12 offen {wflags}'); vm.issue('g%d' % i)
        r = RA + 32 + 4 * i
        A(f'buffer_load_dwordx4 v[{r}:{r+3}], v6, s[{SU}:{SU+3}], s12 offen {wflags}'); vm.issue('u%d' % i)
        if i < 7: A(f's_add_u32 s12, s12, {64*3584}')
    WD = RB + 32
    A('s_lshl_b32 s12, s10, 13')
    A('s_add_u32 s13, s12, 4096')
    for i in range(8):
        r = WD + 4 * i
        A(f'buffer_load_dwordx4 v[{r}:{r+3}], v1, s[{SD}:{SD+3}], {"s12" if i < 4 else "s13"} offen offset:{(i%4)*1024} {wflags}'); vm.issue('d%d' % i)
    vm.wait('wr')
    for k in range(4):
        A(f'v_lshlrev_b32 v{Fv[2*k]}, 16, v{X+k}')
        A(f'v_and_b32 v{Fv[2*k+1]}, 0xffff0000, v{X+k}')
    A(f'v_mul_f32 v4, v{Fv[0]}, v{XN[0]}')
    for k in range(1, 8): A(f'v_fmac_f32 v4, v{Fv[k]}, v{XN[k]}')
    allreduce('v_add_f32', [4], [7], ALL6)
    rne([4], [7])
    A('v_mul_f32 v4, s43, v4')
    A('v_sub_f32 v4, 0, v4')
    A('v_exp_f32 v4, v4')
    A('v_add_f32 v4, 1.0, v4')
    A('v_rcp_f32 v4, v4')
    rne([4], [7])
    A('v_mov_b32 v28, v4')
    XR2 = RB
    A('v_lshlrev_b32 v4, 2, v0')
    for i in range(8):
        A(f'ds_read_b32 v{XR2+i}, v4 offset:{L_XN + i*256}')
    AG = list(range(RB + 8, RB + 16)); AU = list(range(RB + 16, RB + 24))
    for k in AG + AU: A(f'v_mov_b32 v{k}, 0')
    A('s_waitcnt lgkmcnt(0)')
    for i in range(8):
        vm.wait('u%d' % i)
        A(f'v_lshrrev_b32 v29, 16, v{XR2+i}')
        for dw in range(4):
            A(f'v_dot2c_f32_bf16 v{AG[2*dw]}, v{RA+4*i+dw}, v29')
            A(f'v_dot2c_f32_bf16 v{AG[2*dw+1]}, v{RA+4*i+dw}, v{XR2+i}')
            A(f'v_dot2c_f32_bf16 v{AU[2*dw]}, v{RA+32+4*i+dw}, v29')
            A(f'v_dot2c_f32_bf16 v{AU[2*dw+1]}, v{RA+32+4*i+dw}, v{XR2+i}')
    A('s_lshr_b32 s12, s5, 3')
    A('s_lshl_b32 s13, s4, 2')
    A('s_add_u32 s12, s12, s13')
    A('s_lshl_b32 s12, s12, 7')
    A('s_and_b32 s13, s5, 7')
    A('s_add_u32 s12, s12, s13')
    A('s_lshl_b32 s12, s12, 10')
    for k in range(16):
        r = RA + 4 * k
        A(f'buffer_load_dwordx4 v[{r}:{r+3}], v1, s[{SO}:{SO+3}], s12 offen {wflags}'); vm.issue('o%d' % k)
        if k < 15: A('s_add_u32 s12, s12, 8192')
    allreduce('v_add_f32', AG + AU, list(range(8, 24)), ALL6)
    rne(AG, [8, 9, 10, 11]); rne(AU, [8, 9, 10, 11])
    for k in range(8): A(f'v_mul_f32 v{8+k}, s43, v{AG[k]}')
    for k in range(8): A(f'v_sub_f32 v{8+k}, 0, v{8+k}')
    for k in range(8): A(f'v_exp_f32 v{8+k}, v{8+k}')
    for k in range(8): A(f'v_add_f32 v{8+k}, 1.0, v{8+k}')
    for k in range(8): A(f'v_rcp_f32 v{8+k}, v{8+k}')
    for k in range(8): A(f'v_mul_f32 v{AG[k]}, v{AG[k]}, v{8+k}')
    rne(AG, [8, 9, 10, 11])
    for k in range(8): A(f'v_mul_f32 v{AG[k]}, v{AG[k]}, v{AU[k]}')
    rne(AG, [8, 9, 10, 11])
    OUT = 8
    for c in range(8): A(f'v_mov_b32 v{OUT+2*c}, 0')
    for i in range(8):
        vm.wait('d%d' % i)
        A(f'v_lshrrev_b32 v29, 16, v{AG[i]}')
        for dw in range(4):
            A(f'v_dot2c_f32_bf16 v{OUT+4*dw}, v{WD+4*i+dw}, v29')
            A(f'v_dot2c_f32_bf16 v{OUT+4*dw+2}, v{WD+4*i+dw}, v{AG[i]}')
    for c in range(8): A(f'v_mul_f32 v{OUT+2*c}, v{OUT+2*c}, v28')
    for c in range(8): A(f'v_mov_b32 v{OUT+2*c+1}, s42')
    for kp in range(8):
        vm.wait('o%d' % (2 * kp + 1))
        for dw in range(4):
            A(f'v_perm_b32 v{RB+8*kp+2*dw}, v{RA+4*(2*kp+1)+dw}, v{RA+4*(2*kp)+dw}, s44')
            A(f'v_perm_b32 v{RB+8*kp+2*dw+1}, v{RA+4*(2*kp+1)+dw}, v{RA+4*(2*kp)+dw}, s45')
    A('v_lshrrev_b32 v4, 1, v0')
    A('v_lshlrev_b32 v5, 15, v4')
    A('v_and_b32 v6, 1, v0')
    A('v_lshl_add_u32 v5, v6, 6, v5')
    A('v_lshlrev_b32 v6, 9, v4')
    A('s_lshr_b32 s12, s5, 3')
    A('s_and_b32 s13, s5, 7')
    A('s_lshl_b32 s14, s4, 12')
    A('s_lshl_b32 s15, s12, 10')
    A('s_add_u32 s14, s14, s15')
    A('s_lshl_b32 s15, s13, 7')
    A('s_add_u32 s14, s14, s15')
    A(f's_add_u32 s14, s14, {WS_H1O:#x}')
    A('s_lshl_b32 s15, s4, 6')
    A('s_lshl_b32 s12, s12, 4')
    A('s_add_u32 s15, s15, s12')
    A(f's_add_u32 s15, s15, {WS_H1ML:#x}')
    A('v_lshlrev_b32 v7, 14, v0')
    A('s_lshl_b32 s12, s2, 4')
    A(f's_add_u32 s12, s12, {WS_H2:#x}')
    A('s_lshl_b32 s13, s2, 12')
    A(f's_add_u32 s13, s13, {WS_H2:#x}')
    A('v_lshlrev_b32 v29, 3, v0')
    A('s_barrier')
    stamp(4)
    G1 = RA
    LAB('L_h1poll')
    A(f'buffer_load_dwordx4 v[{G1+16}:{G1+19}], v6, s[{SW}:{SW+3}], s15 offen sc1')
    for e in range(4):
        A(f'buffer_load_dwordx4 v[{G1+4*e}:{G1+4*e+3}], v5, s[{SW}:{SW+3}], s14 offen offset:{16*e} sc1')
    A('s_waitcnt vmcnt(0)')
    tags = [G1 + 2 * k + 1 for k in range(10)]
    TT = list(range(G1 + 20, G1 + 30))
    for k in range(10): A(f'v_xor_b32 v{TT[k]}, s42, v{tags[k]}')
    A(f'v_or3_b32 v4, v{TT[0]}, v{TT[1]}, v{TT[2]}')
    A(f'v_or3_b32 v29, v{TT[3]}, v{TT[4]}, v{TT[5]}')
    A(f'v_or3_b32 v4, v4, v{TT[6]}, v{TT[7]}')
    A(f'v_or3_b32 v29, v29, v{TT[8]}, v{TT[9]}')
    A('v_or_b32 v4, v4, v29')
    A('v_cmp_ne_u32 vcc, 0, v4')
    A('s_cbranch_vccz L_h1ok')
    A('s_add_u32 s99, s99, 1')
    A(f's_cmp_gt_u32 s99, {POLL_LIMIT}')
    A('s_cbranch_scc1 L_h1ok')
    A('s_sleep 1')
    A('s_branch L_h1poll')
    LAB('L_h1ok')
    stamp(5)
    mP = G1 + 16; lP = G1 + 18
    A(f'v_mov_b32 v4, v{mP}')
    allreduce('v_max_f32', [4], [29], PAR5)
    A(f'v_sub_f32 v4, v{mP}, v4')
    A('v_mul_f32 v4, s43, v4')
    A('v_exp_f32 v4, v4')
    vals = [G1 + 2 * k for k in range(8)] + [lP]
    for r in vals: A(f'v_mul_f32 v{r}, v{r}, v4')
    allreduce('v_add_f32', vals, list(range(G1 + 20, G1 + 29)), PAR5)
    A(f'v_rcp_f32 v4, v{lP}')
    for k in range(8): A(f'v_mul_f32 v{G1+30+k}, v{vals[k]}, v4')
    for k in range(8): A(f'v_fma_f32 v{vals[k]}, -v{G1+30+k}, v{lP}, v{vals[k]}')
    for k in range(8): A(f'v_fma_f32 v{vals[k]}, v{vals[k]}, v4, v{G1+30+k}')
    for k in range(4): A(f'v_cvt_pk_bf16_f32 v{G1+20+k}, v{vals[2*k]}, v{vals[2*k+1]}')
    for k in range(4):
        A(f'v_readlane_b32 s{60+k}, v{G1+20+k}, 0')
        A(f'v_readlane_b32 s{64+k}, v{G1+20+k}, 1')
    for kp in range(8):
        for c in range(8):
            A(f'v_dot2c_f32_bf16 v{OUT+2*c}, s{60+kp}, v{RB+8*kp+c}')
    for e in range(4):
        A(f'buffer_store_dwordx4 v[{OUT+4*e}:{OUT+4*e+3}], v7, s[{SW}:{SW+3}], s12 offen sc1')
        if e < 3: A('s_add_u32 s12, s12, 4096')
    A('s_lshl_b32 s14, s2, 3')
    A('v_mov_b32 v4, s14')
    A(f'ds_read_b64 v[30:31], v4 offset:{L_BASE}')
    LAB('L_h2poll')
    for e in range(4):
        A(f'buffer_load_dwordx4 v[{G1+4*e}:{G1+4*e+3}], v1, s[{SW}:{SW+3}], s13 offen offset:{1024*e} sc1')
    A('s_waitcnt vmcnt(0)')
    tags = [G1 + 2 * k + 1 for k in range(8)]
    for k in range(8): A(f'v_xor_b32 v{TT[k]}, s42, v{tags[k]}')
    A(f'v_or3_b32 v4, v{TT[0]}, v{TT[1]}, v{TT[2]}')
    A(f'v_or3_b32 v29, v{TT[3]}, v{TT[4]}, v{TT[5]}')
    A(f'v_or3_b32 v4, v4, v{TT[6]}, v{TT[7]}')
    A('v_or_b32 v4, v4, v29')
    A('v_cmp_ne_u32 vcc, 0, v4')
    A('s_cbranch_vccz L_h2ok')
    A('s_add_u32 s99, s99, 1')
    A(f's_cmp_gt_u32 s99, {POLL_LIMIT}')
    A('s_cbranch_scc1 L_h2ok')
    A('s_sleep 1')
    A('s_branch L_h2poll')
    LAB('L_h2ok')
    A(f'v_add_f32 v{G1}, v{G1}, v{G1+4}')
    A(f'v_add_f32 v{G1+2}, v{G1+2}, v{G1+6}')
    A(f'v_add_f32 v{G1+8}, v{G1+8}, v{G1+12}')
    A(f'v_add_f32 v{G1+10}, v{G1+10}, v{G1+14}')
    A(f'v_add_f32 v{G1}, v{G1}, v{G1+8}')
    A(f'v_add_f32 v{G1+2}, v{G1+2}, v{G1+10}')
    allreduce('v_add_f32', [G1, G1 + 2], [G1 + 20, G1 + 21], ALL6)
    A('s_waitcnt lgkmcnt(0)')
    A(f'v_add_f32 v{G1}, v{G1}, v30')
    A(f'v_add_f32 v{G1+2}, v{G1+2}, v31')
    A(f'v_cvt_pk_bf16_f32 v4, v{G1}, v{G1+2}')
    A('s_lshl_b32 s14, s2, 2')
    A('v_mov_b32 v5, s14')
    A('s_mov_b64 exec, 1')
    A(f'buffer_store_dword v4, v5, s[{SOUT}:{SOUT+3}], 0 offen')
    A('s_cmp_lg_u32 s2, 0')
    A('s_cbranch_scc1 L_nogen')
    A('v_mov_b32 v6, s42')
    A('v_mov_b32 v7, 0')
    A(f'buffer_store_dword v6, v7, s[{SW}:{SW+3}], 0 offen sc1')
    LAB('L_nogen')
    if stamps:
        stamp(6)
        A('s_mov_b32 s98, s100')
        A('s_waitcnt lgkmcnt(0)')
        A('v_mov_b32 v8, s84'); A('v_mov_b32 v9, s85'); A('v_mov_b32 v10, s96'); A('v_mov_b32 v11, s97')
        A('s_lshl_b32 s14, s2, 4')
        A(f's_add_u32 s14, s14, {WS_STAMP:#x}')
        A('v_mov_b32 v7, 0')
        A(f'buffer_store_dwordx4 v[8:11], v7, s[{SW}:{SW+3}], s14 offen')
        A('s_lshl_b32 s14, s2, 6')
        A(f's_add_u32 s14, s14, {WS_STAMP+0x10000:#x}')
        for k in range(0, 7, 2):
            A(f'v_mov_b32 v12, s{84+2*k}'); A(f'v_mov_b32 v13, s{85+2*k}')
            A(f'v_mov_b32 v14, s{86+2*k}'); A(f'v_mov_b32 v15, s{87+2*k}')
            A(f'buffer_store_dwordx4 v[12:15], v7, s[{SW}:{SW+3}], s14 offen offset:{8*k}')
            A('s_nop 1')
    LAB('L_end')
    A('s_endpgm')

    body = pad(L)
    check_loops(body)
    out = [HEADER.rstrip('\n')]
    out.append('; Override launch geometry by editing the next line (default: block=256,')
    out.append(f'; @launch grid=(256,1,1) block=(576,1,1) lds={L_SIZE}')
    out.append('.amdgcn_target "amdgcn-amd-amdhsa--gfx950"')
    out.append('.text')
    out.append(f'.globl {NAME}')
    out.append('.p2align 8')
    out.append(f'.type {NAME},@function')
    out += body
    out.append('.section .rodata,"a"')
    out.append('.p2align 6')
    out.append(f'.amdhsa_kernel {NAME}')
    out.append('  .amdhsa_next_free_vgpr 168')
    out.append('  .amdhsa_next_free_sgpr 102')
    out.append('  .amdhsa_accum_offset 168')
    out.append('  .amdhsa_group_segment_fixed_size 0')
    out.append('  .amdhsa_kernarg_size 104')
    out.append('  .amdhsa_user_sgpr_count 2')
    out.append('  .amdhsa_user_sgpr_kernarg_segment_ptr 1')
    out.append('  .amdhsa_system_sgpr_workgroup_id_x 1')
    out.append('.end_amdhsa_kernel')
    return '\n'.join(out) + '\n'

if __name__ == '__main__':
    open('k2s.s', 'w').write(gen(stamps=True))
    open('k2.s', 'w').write(gen(stamps=False))
```

```python
import sys
from asmlib import pad, check_loops, VM
NAME = 'parallel_sum__gqa_block_cached__moe_arch_mod__decode_kernel'

WS_GEN = 0x0
WS_HQ = 0x10000
WS_TK = 0x8000
WS_HM = 0x20000
WS_H1O = 0x100000
WS_H1ML = 0x200000
WS_H2 = 0x300000
WS_STAMP = 0x10000000
L_PO = 0x0000
PO_W = 2304; PO_I = 288
L_ML = 0x4800
L_Q = 0x4900
L_XN = 0x4D00
L_BASE = 0x5500
L_WG = 0x6000
L_WD = 0xA000
L_WO = 0xC000
L_SIZE = 0x10000
THRESH = 24

POLL_LIMIT = 20000
LOG2E = 0x3fb8aa3b
SCALE = 0x3db504f3

HEADER = open('parallel_sum__gqa_block_cached__moe_arch_mod__decode.s.ref').read().split('; Override launch')[0]

def gen(stamps=False, kflags='nt', wflags='nt', wqflags=None, h2sleep=0, h2delay=0, timeline=False, svcst=False, prio='none', svcprio=3, tl4=False, svc_novmem=False, svt=False, nstop=None, yprio=0, pp=False, claimpos='pre', jb=3, il=False, cx=0, loc=False, rot=0, tla=False, tlb=False, tkbase=WS_TK, tkstride=256, ns=8, smap='st', srot=0, pipe1=0, pipe2=0, p1sleep=2, thresh=THRESH, sw=4, dw=4, direct1=False, direct2=False, uni=False, compact=False, mlw=False, qs=32, tst=False, mst=False, stf='sc1', ldf='sc1', warm=0, h1delay=0, mdelay=0, xnt=False, pre=0, adel=None):
    WS_H1O, WS_H1ML, WS_H2 = (0x80000, 0x4000, 0x40000) if compact else (0x100000, 0x200000, 0x300000)
    if mlw and compact: WS_H1ML = 0x100000
    LR = jb + 3; RR = 1 << LR; NTK = 8 * RR
    if wqflags is None: wqflags = wflags
    L = []
    novm = [False]
    def A(s):
        if novm[0] and s.startswith('buffer_load'): s = 's_nop 0'
        L.append('  ' + s)
    def LAB(s): L.append(s + ':')
    def C(s): L.append('  ; ' + s)

    def srd(q, lo, hi, n):
        A(f's_mov_b32 s{q}, s{lo}'); A(f's_mov_b32 s{q+1}, s{hi}')
        A(f's_mov_b32 s{q+2}, {n:#x}'); A(f's_mov_b32 s{q+3}, 0x20000')

    def allreduce(op, regs, tmps, steps):
        for st in steps:
            if st.startswith('ror'):
                n = int(st[3:])
                for r in regs:
                    A(f'{op}_dpp v{r}, v{r}, v{r} row_ror:{n} row_mask:0xf bank_mask:0xf')
            else:
                sw = 'v_permlane16_swap_b32' if st == 'x16' else 'v_permlane32_swap_b32'
                for r, t in zip(regs, tmps): A(f'v_mov_b32 v{t}, v{r}')
                for r, t in zip(regs, tmps): A(f'{sw} v{t}, v{r}')
                for r, t in zip(regs, tmps): A(f'{op} v{r}, v{r}, v{t}')

    def rne(regs, tmps):
        for k in range(0, len(regs), 2):
            a = regs[k]; b = regs[k + 1] if k + 1 < len(regs) else a
            A(f'v_cvt_pk_bf16_f32 v{tmps[k//2]}, v{a}, v{b}')
        for k in range(0, len(regs), 2):
            a = regs[k]
            A(f'v_lshlrev_b32 v{a}, 16, v{tmps[k//2]}')
            if k + 1 < len(regs):
                A(f'v_and_b32 v{regs[k+1]}, 0xffff0000, v{tmps[k//2]}')

    ALL6 = ['ror1', 'ror2', 'ror4', 'ror8', 'x16', 'x32']
    PAR5 = ['ror2', 'ror4', 'ror8', 'x16', 'x32']

    def stamp(k):
        if stamps:
            A(f's_memrealtime s[{84+2*k}:{85+2*k}]')

    def tstamp(k):
        A('s_memrealtime s[96:97]')
        A('s_lshl_b32 s14, s8, 2')
        A(f's_add_u32 s14, s14, {k}')
        A('s_mov_b32 m0, s14')
        A('s_waitcnt lgkmcnt(0)')
        A('v_writelane_b32 v11, s96, m0')

    def svstamp(k):
        if svt:
            A('s_memrealtime s[20:21]')
            A('s_waitcnt lgkmcnt(0)')
            A(f'v_writelane_b32 v160, s20, {k}')

    L.append(f'{NAME}:')
    A('s_cmp_ge_u32 s2, 256')
    A('s_cbranch_scc1 L_end')
    A('s_load_dwordx16 s[16:31], s[0:1], 0')
    A('s_load_dwordx8 s[32:39], s[0:1], 64')
    A('s_load_dwordx2 s[40:41], s[0:1], 96')
    stamp(0)
    A('v_lshrrev_b32 v1, 6, v0')
    A('v_and_b32 v0, 63, v0')
    A('v_readfirstlane_b32 s3, v1')
    if stamps: A('s_mov_b32 s101, s2')
    A('s_and_b32 s4, s2, 7')
    A('s_lshr_b32 s5, s2, 3')
    A('s_and_b32 s5, s5, 7')
    A('s_and_b32 s2, s2, 0xc0')
    A('s_lshl_b32 s4, s4, 3')
    A('s_or_b32 s2, s2, s4')
    A('s_or_b32 s2, s2, s5')
    A('s_and_b32 s4, s2, 7')
    A('s_lshr_b32 s5, s2, 3')
    if loc:
        A('s_and_b32 s6, s5, 3')
        A('s_lshr_b32 s7, s5, 3')
        A('s_lshl_b32 s7, s7, 2')
        A('s_or_b32 s6, s6, s7')
        A('s_bfe_u32 s7, s5, 0x10002')
        A('s_lshl_b32 s7, s7, 4')
        A('s_or_b32 s5, s6, s7')
        A('s_lshl_b32 s2, s5, 3')
        A('s_or_b32 s2, s2, s4')
    A(f's_mov_b32 s43, {LOG2E:#x}')
    A('s_mov_b32 s44, 0x05040100')
    A('s_mov_b32 s45, 0x07060302')
    A(f's_mov_b32 s46, {SCALE:#x}')
    A(f's_mov_b32 s47, {SCALE:#x}')
    A('s_cmp_eq_u32 s3, 0')
    A('s_cbranch_scc1 L_service')

    SK, SV, SW = 48, 52, 56
    vK, vV, vM, vML, vL, vAl = 1, 2, 3, 4, 5, 6
    T0, T1, T2, T3 = 8, 9, 10, 11
    Q, P, S, F, O, KR, KB, VR = 12, 20, 24, 24, 40, 72, 104, 136
    C('stream wave')
    A('s_sub_u32 s3, s3, 1')
    A(f'v_and_b32 v{vK}, 7, v0')
    A(f'v_lshlrev_b32 v{vK}, 8, v{vK}')
    A(f'v_bfe_u32 v{T0}, v0, 3, 1')
    A(f'v_lshl_add_u32 v{vK}, v{T0}, 6, v{vK}')
    A(f'v_lshrrev_b32 v{T0}, 4, v0')
    A(f'v_lshl_add_u32 v{vK}, v{T0}, 4, v{vK}')
    A(f'v_and_b32 v{vV}, 15, v0')
    A(f'v_lshlrev_b32 v{vV}, 4, v{vV}')
    A(f'v_bfe_u32 v{T0}, v0, 4, 1')
    A(f'v_lshl_add_u32 v{vV}, v{T0}, 10, v{vV}')
    A(f'v_lshrrev_b32 v{T0}, 5, v0')
    A(f'v_lshl_add_u32 v{vV}, v{T0}, 12, v{vV}')
    SH = 5 - jb
    RT = 32 * sw
    D0 = 512 + RT * ns
    assert (2048 - D0) % (1 << SH) == 0 and D0 <= 2048
    NTKD = (2048 - D0) >> SH
    A(f's_and_b32 s6, s5, {(1 << jb) - 1}')
    A('s_lshl_b32 s6, s6, 3')
    A('s_add_u32 s6, s6, s3')
    A(f's_lshl_b32 s6, s6, {SH}')
    A(f's_lshr_b32 s9, s5, {jb}')
    A('s_add_u32 s6, s6, s9')
    A('s_add_u32 s64, s6, 256')
    A(f's_add_u32 s61, s9, {D0}')
    A('s_lshl_b32 s13, s4, 24')
    A(f's_mul_i32 s62, s4, {rot}')
    A('s_lshl_b32 s6, s6, 13')
    A('s_add_u32 s6, s6, s62')
    A('s_and_b32 s6, s6, 0xffffff')
    A('s_add_u32 s6, s6, s13')
    A('s_add_u32 s7, s6, 4096')
    A('s_lshl_b32 s15, s64, 13')
    A('s_add_u32 s15, s15, s62')
    A('s_and_b32 s15, s15, 0xffffff')
    A('s_add_u32 s15, s15, s13')
    if smap == 'st':
        A(f's_mul_i32 s60, s5, {sw}')
        A('s_add_u32 s60, s60, s3')
    elif smap == 'hi':
        A('s_and_b32 s60, s5, 7')
        A('s_lshl_b32 s60, s60, 4')
        A('s_lshl_b32 s14, s3, 2')
        A('s_add_u32 s60, s60, s14')
        A('s_lshr_b32 s14, s5, 3')
        A('s_add_u32 s60, s60, s14')
    A('s_mov_b32 s67, s60')
    A('s_mov_b32 s60, 512')
    A(f's_cmp_lt_u32 s3, {dw}')
    A('s_cselect_b32 s65, 1, 0')
    A(f's_cmp_lt_u32 s3, {sw}')
    A('s_cselect_b32 s66, 1, 0')
    A('s_lshl_b32 s9, s9, 3')
    A('s_add_u32 s9, s9, s4')
    A(f's_mul_i32 s12, s9, {tkstride}')
    A(f's_add_u32 s12, s12, {tkbase:#x}')
    A('v_mov_b32 v7, 0')
    A('s_waitcnt lgkmcnt(0)')
    A('s_load_dword s42, s[40:41], 0')
    srd(SK, 18, 19, 0x8000000)
    srd(SV, 20, 21, 0x8000000)
    srd(SW, 40, 41, 0x10200000 if stamps else 0x400000)

    def kloads(base=None):
        if base is None: base = KR
        for T in range(4):
            for j in range(2):
                r = base + (T * 2 + j) * 4
                so = 's6' if T < 2 else 's7'
                A(f'buffer_load_dwordx4 v[{r}:{r+3}], v{vK}, s[{SK}:{SK+3}], {so} offen offset:{(T%2)*2048 + j*128} {kflags}')
    def vloads(base=None):
        if base is None: base = VR
        for j8 in range(8):
            r = base + j8 * 4
            A(f'buffer_load_dwordx4 v[{r}:{r+3}], v{vV}, s[{SV}:{SV+3}], s6 offen offset:{(j8//4)*2048 + (j8%4)*256} {kflags}')

    A('s_barrier')
    kloads()
    vloads()
    for k in range(32): A(f'v_mov_b32 v{O+k}, 0')
    A(f'v_mov_b32 v{vM}, 0xff800000')
    A(f'v_mov_b32 v{vML}, 0xff800000')
    A(f'v_mov_b32 v{vL}, 0')
    A(f'v_and_b32 v{T0}, 3, v0')
    A(f'v_lshlrev_b32 v{T0}, 8, v{T0}')
    A(f'v_bfe_u32 v{T1}, v0, 3, 1')
    A(f'v_lshl_add_u32 v{T0}, v{T1}, 6, v{T0}')
    A(f'v_lshrrev_b32 v{T1}, 4, v0')
    A(f'v_lshl_add_u32 v{T0}, v{T1}, 4, v{T0}')
    A('s_mov_b32 s8, 0')
    A('s_waitcnt vmcnt(8)')
    A('s_barrier')
    A('s_barrier')
    A(f'ds_read_b128 v[{Q}:{Q+3}], v{T0} offset:{L_Q}')
    A(f'ds_read_b128 v[{Q+4}:{Q+7}], v{T0} offset:{L_Q+128}')
    A('s_waitcnt lgkmcnt(0)')
    A('s_mul_i32 s42, s42, 1664525')
    A('s_add_u32 s42, s42, 1013904223')
    A('s_or_b32 s9, s42, 0x01010101')
    for k in range(4):
        A(f's_bfe_u32 s{92+k}, s9, {(8 << 16) | (8 * k):#x}')
    if timeline: A('v_mov_b32 v11, 0')
    if yprio:
        A('s_cmp_ge_u32 s3, 4')
        A('s_cbranch_scc0 L_noyp')
        A(f's_setprio {yprio}')
        LAB('L_noyp')
    if prio in ('alt', 'young1'):
        A('s_cmp_ge_u32 s3, 4')
        A('s_cbranch_scc0 L_noprio')
        A('s_setprio 1')
        LAB('L_noprio')
    LAB('L_loop')
    if prio == 'alt':
        A('s_cmp_ge_u32 s3, 4')
        A('s_cbranch_scc1 L_prd')
        A('s_bitcmp1_b32 s8, 0')
        A('s_cbranch_scc1 L_pr2')
        A('s_setprio 0')
        A('s_branch L_prd')
        LAB('L_pr2')
        A('s_setprio 2')
        LAB('L_prd')
    A('s_waitcnt vmcnt(8)')
    if timeline and not tl4: A('s_memrealtime s[98:99]')
    if tl4: tstamp(0)
    A('v_readfirstlane_b32 s9, v7')
    A(f's_lshl_b32 s6, s9, {SH}')
    A('s_add_u32 s6, s6, s61')
    A(f's_cmp_lt_u32 s9, {NTKD}')
    A('s_cselect_b32 s10, s65, 0')
    A(f's_cmp_le_u32 s8, {ns}')
    A('s_cbranch_scc0 L_dyn')
    A('s_add_u32 s6, s60, s67')
    A(f's_add_u32 s60, s60, {RT}')
    if srot:
        assert RT & (RT - 1) == 0
        A(f's_add_u32 s67, s67, {srot}')
        A(f's_and_b32 s67, s67, {RT-1}')
    A('s_mov_b32 s10, s66')
    A('s_cmp_eq_u32 s8, 0')
    A('s_cbranch_scc0 L_dyn')
    A('s_mov_b32 s6, s64')
    A(f's_sub_u32 s60, s60, {RT}')
    A('s_mov_b32 s10, 1')
    LAB('L_dyn')
    A('s_lshl_b32 s6, s6, 13')
    A('s_add_u32 s6, s6, s62')
    A('s_and_b32 s6, s6, 0xffffff')
    A('s_add_u32 s6, s6, s13')
    A('s_add_u32 s7, s6, 4096')
    A('s_cmp_lt_u32 s8, 4096')
    A('s_cselect_b32 s10, s10, 0')
    A(f's_cmp_ge_u32 s8, {ns}')
    A('s_cselect_b32 s63, s65, 0')
    for T in range(4):
        A(f'v_mfma_f32_16x16x32_bf16 v[{S+4*T}:{S+4*T+3}], v[{KR+8*T}:{KR+8*T+3}], v[{Q}:{Q+3}], 0')
    for T in range(4):
        A(f'v_mfma_f32_16x16x32_bf16 v[{S+4*T}:{S+4*T+3}], v[{KR+8*T+4}:{KR+8*T+7}], v[{Q+4}:{Q+7}], v[{S+4*T}:{S+4*T+3}]')
    A('s_cmp_eq_u32 s10, 0')
    A('s_cbranch_scc1 L_nok')
    kloads()
    if tlb: tstamp(1)
    A('s_cmp_eq_u32 s63, 0')
    A('s_cbranch_scc1 L_noclaim')
    A('v_mov_b32 v7, 1')
    A('s_mov_b64 exec, 1')
    A(f'buffer_atomic_add v7, off, s[{SW}:{SW+3}], s12 sc0 sc1')
    A('s_mov_b64 exec, -1')
    LAB('L_noclaim')
    if tlb: tstamp(2)
    A('s_bitcmp1_b32 s8, 0')
    A('s_cbranch_scc1 L_vvr')
    vloads(KB)
    A('s_branch L_vdone')
    LAB('L_vvr')
    vloads(VR)
    LAB('L_vdone')
    if tlb: tstamp(3)
    LAB('L_nok')
    if tl4 and not tla and not tlb: tstamp(1)
    A('s_nop 5')
    for r in range(4):
        A(f'v_permlane32_swap_b32 v{S+r}, v{S+8+r}')
        A(f'v_permlane32_swap_b32 v{S+4+r}, v{S+12+r}')
    for r in range(4):
        A(f'v_add_f32_dpp v{S+r}, v{S+8+r}, v{S+r} row_ror:8 row_mask:0xf bank_mask:0xf')
        A(f'v_add_f32_dpp v{S+4+r}, v{S+12+r}, v{S+4+r} row_ror:8 row_mask:0xf bank_mask:0xf')
    Z = list(range(S, S + 8)); TT = list(range(S + 8, S + 12))
    rne(Z, TT)
    for k in range(0, 8, 2):
        A(f'v_pk_mul_f32 v[{Z[k]}:{Z[k]+1}], v[{Z[k]}:{Z[k]+1}], s[46:47]')
    rne(Z, TT)
    A(f'v_max3_f32 v{T0}, v{Z[0]}, v{Z[1]}, v{Z[2]}')
    A(f'v_max3_f32 v{T1}, v{Z[3]}, v{Z[4]}, v{Z[5]}')
    A(f'v_max3_f32 v{T0}, v{Z[6]}, v{Z[7]}, v{T0}')
    A(f'v_max_f32 v{T0}, v{T0}, v{T1}')
    allreduce('v_max_f32', [T0], [T1], ['x16', 'x32'])
    A(f'v_max_f32 v{vM}, v{vM}, v{T0}')
    A(f'v_mul_f32 v{T1}, s43, v{vM}')
    A(f'v_sub_f32 v{T0}, v{vML}, v{T1}')
    A(f'v_mov_b32 v{vML}, v{T1}')
    A(f'v_exp_f32 v{vAl}, v{T0}')
    for k in range(8):
        A(f'v_fma_f32 v{Z[k]}, v{Z[k]}, s43, -v{vML}')
    for k in range(8):
        A(f'v_exp_f32 v{Z[k]}, v{Z[k]}')
    for k in range(16):
        A(f'v_pk_mul_f32 v[{O+2*k}:{O+2*k+1}], v[{O+2*k}:{O+2*k+1}], v[{vAl}:{vAl+1}] op_sel_hi:[1,0]')
    for k in range(4):
        A(f'v_cvt_pk_bf16_f32 v{P+k}, v{Z[2*k]}, v{Z[2*k+1]}')
    A(f'v_pk_add_f32 v[{Z[0]}:{Z[1]}], v[{Z[0]}:{Z[1]}], v[{Z[2]}:{Z[3]}]')
    A(f'v_pk_add_f32 v[{Z[4]}:{Z[5]}], v[{Z[4]}:{Z[5]}], v[{Z[6]}:{Z[7]}]')
    A(f'v_pk_add_f32 v[{Z[0]}:{Z[1]}], v[{Z[0]}:{Z[1]}], v[{Z[4]}:{Z[5]}]')
    A(f'v_add_f32 v{Z[0]}, v{Z[0]}, v{Z[1]}')
    A(f'v_fma_f32 v{vL}, v{vL}, v{vAl}, v{Z[0]}')
    A('s_cmp_eq_u32 s10, 0')
    A('s_cbranch_scc1 L_w0')
    A('s_cmp_eq_u32 s63, 0')
    A('s_cbranch_scc1 L_w16')
    A('s_waitcnt vmcnt(17)')
    A('s_branch L_w1')
    LAB('L_w16')
    A('s_waitcnt vmcnt(16)')
    A('s_branch L_w1')
    LAB('L_w0')
    A('s_waitcnt vmcnt(0)')
    LAB('L_w1')
    if tl4 and not tlb: tstamp(2)
    if timeline and not tl4:
        A('s_waitcnt lgkmcnt(0)')
        A('s_memrealtime s[96:97]')
        A('s_lshl_b32 s14, s8, 1')
        A('s_mov_b32 m0, s14')
        A('s_nop 1')
        A('v_writelane_b32 v11, s98, m0')
        A('s_waitcnt lgkmcnt(0)')
        A('s_add_u32 s14, s14, 1')
        A('s_mov_b32 m0, s14')
        A('s_nop 1')
        A('v_writelane_b32 v11, s96, m0')
    def pv(VB):
        for t in range(4):
            fb = F + (t % 2) * 8
            for jj in range(4):
                A(f'v_perm_b32 v{fb+jj}, v{VB+(2*jj+1)*4+t}, v{VB+(2*jj)*4+t}, s44')
            for jj in range(4):
                A(f'v_perm_b32 v{fb+4+jj}, v{VB+(2*jj+1)*4+t}, v{VB+(2*jj)*4+t}, s45')
            o0 = O + (2 * t) * 4; o1 = O + (2 * t + 1) * 4
            A(f'v_mfma_f32_16x16x32_bf16 v[{o0}:{o0+3}], v[{fb}:{fb+3}], v[{P}:{P+3}], v[{o0}:{o0+3}]')
            A(f'v_mfma_f32_16x16x32_bf16 v[{o1}:{o1+3}], v[{fb+4}:{fb+7}], v[{P}:{P+3}], v[{o1}:{o1+3}]')
    A('s_bitcmp1_b32 s8, 0')
    A('s_cbranch_scc0 L_pvr')
    pv(KB)
    A('s_branch L_pvd')
    LAB('L_pvr')
    pv(VR)
    LAB('L_pvd')
    A('s_cmp_eq_u32 s10, 0')
    A('s_cbranch_scc1 L_done')
    if tl4 and not tlb: tstamp(3)
    A('s_add_u32 s8, s8, 1')
    A('s_branch L_loop')
    LAB('L_done')
    if timeline:
        A('s_lshl_b32 s14, s101, 3')
        A('s_add_u32 s14, s14, s3')
        A('s_lshl_b32 s14, s14, 8')
        A(f's_add_u32 s14, s14, {WS_STAMP+0x20000:#x}')
        A('v_lshlrev_b32 v10, 2, v0')
        A(f'buffer_store_dword v11, v10, s[{SW}:{SW+3}], s14 offen')
    allreduce('v_add_f32', [vL], [T1], ['x16', 'x32'])
    A(f'v_and_b32 v{T0}, 3, v0')
    A(f'v_lshlrev_b32 v{T0}, 6, v{T0}')
    A(f'v_lshrrev_b32 v{T1}, 4, v0')
    A(f'v_lshl_add_u32 v{T0}, v{T1}, 4, v{T0}')
    A(f's_mul_i32 s9, s3, {PO_W}')
    A(f'v_add_u32 v{T0}, s9, v{T0}')
    A(f'v_and_b32 v{T2}, 3, v0')
    A(f'v_lshlrev_b32 v{T2}, 3, v{T2}')
    A('s_lshl_b32 s9, s3, 5')
    A(f'v_add_u32 v{T2}, s9, v{T2}')
    A(f'v_mov_b32 v{S}, v{vM}')
    A(f'v_mov_b32 v{S+1}, v{vL}')
    A('s_mov_b32 exec_lo, 0x000f000f')
    A('s_mov_b32 exec_hi, 0x000f000f')
    for i in range(8):
        A(f'ds_write_b128 v{T0}, v[{O+4*i}:{O+4*i+3}] offset:{L_PO + i*PO_I}')
    A('s_mov_b32 exec_lo, 0xf')
    A('s_mov_b32 exec_hi, 0')
    A(f'ds_write_b64 v{T2}, v[{S}:{S+1}] offset:{L_ML}')
    if adel:
        A('s_mov_b64 exec, 1')
        A('s_lshl_b32 s9, s3, 2')
        A(f'v_mov_b32 v{T3}, s9')
        A(f'ds_write_b32 v{T3}, v7 offset:{0x5E00}')
    A('s_mov_b64 exec, -1')
    A(f'v_and_b32 v{T0}, 7, v0')
    A(f'v_mul_u32_u24 v{T0}, {PO_I}, v{T0}')
    A(f'v_lshrrev_b32 v{T1}, 3, v0')
    A(f'v_lshl_add_u32 v{T0}, v{T1}, 4, v{T0}')
    A('s_lshl_b32 s9, s3, 7')
    A(f'v_add_u32 v{T0}, s9, v{T0}')
    A(f'v_lshrrev_b32 v{T1}, 5, v0')
    A(f'v_lshlrev_b32 v{T2}, 3, v{T1}')
    A('s_lshl_b32 s9, s3, 4')
    A(f'v_add_u32 v{T2}, s9, v{T2}')
    if mlw:
        A(f'v_lshlrev_b32 v{T3}, 12, v{T1}')
        A(f'v_and_b32 v{T1}, 7, v0')
        A(f'v_lshl_add_u32 v{T3}, v{T1}, 4, v{T3}')
    else:
        A(f'v_lshlrev_b32 v{T3}, 9, v{T1}')
    A(f'v_lshlrev_b32 v{T1}, 4, v0')
    A('s_lshl_b32 s9, s2, 11')
    A('s_lshl_b32 s10, s3, 10')
    A('s_add_u32 s9, s9, s10')
    A(f's_add_u32 s9, s9, {WS_H1O:#x}')
    A('s_lshl_b32 s10, s4, 2')
    A('s_lshl_b32 s13, s3, 1')
    A('s_add_u32 s10, s10, s13')
    A(f's_lshl_b32 s10, s10, {12 if mlw else 9}')
    A(f's_lshl_b32 s13, s5, {7 if mlw else 4}')
    A('s_add_u32 s10, s10, s13')
    A(f's_add_u32 s10, s10, {WS_H1ML:#x}')
    A('s_waitcnt lgkmcnt(0)')
    A('s_barrier')
    A('s_cmp_ge_u32 s3, 2')
    A('s_cbranch_scc1 L_end')
    if mst: A('s_memrealtime s[68:69]')
    MM = 72; MO = 88
    for w in range(8):
        A(f'ds_read_b64 v[{MM+2*w}:{MM+2*w+1}], v{T2} offset:{L_ML + w*32}')
    for w in range(8):
        A(f'ds_read_b128 v[{MO+4*w}:{MO+4*w+3}], v{T0} offset:{L_PO + w*PO_W}')
    A('s_waitcnt lgkmcnt(8)')
    mm = [MM + 2 * w for w in range(8)]
    A(f'v_max3_f32 v{S}, v{mm[0]}, v{mm[1]}, v{mm[2]}')
    A(f'v_max3_f32 v{S+1}, v{mm[3]}, v{mm[4]}, v{mm[5]}')
    A(f'v_max3_f32 v{S}, v{mm[6]}, v{mm[7]}, v{S}')
    A(f'v_max_f32 v{S}, v{S}, v{S+1}')
    for w in range(8):
        A(f'v_sub_f32 v{mm[w]}, v{mm[w]}, v{S}')
    for w in range(8):
        A(f'v_mul_f32 v{mm[w]}, s43, v{mm[w]}')
    for w in range(8):
        A(f'v_exp_f32 v{mm[w]}, v{mm[w]}')
    A(f'v_mul_f32 v{S+1}, v{mm[0]}, v{mm[0]+1}')
    for w in range(1, 8):
        A(f'v_fmac_f32 v{S+1}, v{mm[w]}, v{mm[w]+1}')
    A(f'v_mov_b32 v{S+2}, s42')
    A(f'v_mov_b32 v{S+3}, s42')
    A(f's_mov_b32 exec_lo, {0xff if mlw else 1}')
    A(f's_mov_b32 exec_hi, {0xff if mlw else 1}')
    A(f'buffer_store_dwordx4 v[{S}:{S+3}], v{T3}, s[{SW}:{SW+3}], s10 offen {stf}')
    if mst: A('s_memrealtime s[70:71]')
    A('s_mov_b64 exec, -1')
    for w in range(8):
        A(f's_waitcnt lgkmcnt({7-w})')
        for r in range(4):
            if w == 0: A(f'v_mul_f32 v{S+4+r}, v{mm[0]}, v{MO+r}')
            else: A(f'v_fmac_f32 v{S+4+r}, v{mm[w]}, v{MO+4*w+r}')
    for r in range(4): A(f'v_and_b32 v{S+4+r}, 0xffffff00, v{S+4+r}')
    for r in range(4): A(f'v_or_b32 v{S+4+r}, s{92+r}, v{S+4+r}')
    A(f'buffer_store_dwordx4 v[{S+4}:{S+7}], v{T1}, s[{SW}:{SW+3}], s9 offen {stf}')
    if mst:
        A('s_memrealtime s[72:73]')
        A('s_waitcnt vmcnt(0)')
        A('s_memrealtime s[74:75]')
        A('s_waitcnt lgkmcnt(0)')
        A('v_mov_b32 v72, s68'); A('v_mov_b32 v73, s70'); A('v_mov_b32 v74, s72'); A('v_mov_b32 v75, s74')
        A('s_lshl_b32 s14, s101, 1')
        A('s_add_u32 s14, s14, s3')
        A('s_lshl_b32 s14, s14, 4')
        A(f's_add_u32 s14, s14, {WS_STAMP+0x30000:#x}')
        A('v_mov_b32 v76, 0')
        A('s_mov_b64 exec, 1')
        A(f'buffer_store_dwordx4 v[72:75], v76, s[{SW}:{SW+3}], s14 offen')
    A('s_endpgm')

    LAB('L_service')
    SX, SWQ, SW, SWR, SG, SU, SD, SO, SOUT = 48, 52, 56, 60, 64, 68, 72, 76, 80
    vm = VM(lambda s: L.append(s))
    RA, RB = 32, 96
    TB = 16
    X = 24; Fv = list(range(8, 16)); XN = list(range(16, 24))
    A('s_setprio 3')
    A('s_mov_b32 s99, 0')
    A('v_lshlrev_b32 v1, 4, v0')
    A('v_lshrrev_b32 v2, 3, v0')
    A('v_lshlrev_b32 v2, 13, v2')
    A('v_and_b32 v3, 7, v0')
    A('v_lshl_add_u32 v2, v3, 4, v2')
    A('s_and_b32 s98, s5, 7')
    A('s_lshr_b32 s97, s5, 3')
    A('s_lshl_b32 s6, s4, 10')
    A('s_lshl_b32 s7, s98, 7')
    A('s_add_u32 s6, s6, s7')
    A('s_lshl_b32 s7, s97, 20')
    A('s_add_u32 s6, s6, s7')
    A('s_waitcnt lgkmcnt(0)')
    A('s_load_dword s42, s[40:41], 0')
    srd(SW, 40, 41, 0x10200000 if stamps else 0x400000)
    A(f's_and_b32 s9, s5, {(1 << jb) - 1}')
    A('s_cmp_lg_u32 s9, 0')
    A('s_cbranch_scc1 L_notk')
    A(f's_lshr_b32 s9, s5, {jb}')
    A('s_lshl_b32 s9, s9, 3')
    A('s_add_u32 s9, s9, s4')
    A(f's_mul_i32 s9, s9, {tkstride}')
    A(f's_add_u32 s9, s9, {tkbase:#x}')
    A('v_mov_b32 v8, 0')
    A('s_mov_b64 exec, 1')
    A(f'buffer_store_dword v8, off, s[{SW}:{SW+3}], s9 sc1')
    A('s_mov_b64 exec, -1')
    LAB('L_notk')
    srd(SX, 16, 17, 1024)
    srd(SWQ, 22, 23, 512 * 8192)
    A(f'buffer_load_dwordx4 v[{X}:{X+3}], v1, s[{SX}:{SX+3}], 0 offen' + (' nt' if xnt else '')); vm.issue('x')

    for i in range(16):
        r = RA + 4 * i
        A(f'buffer_load_dwordx4 v[{r}:{r+3}], v2, s[{SWQ}:{SWQ+3}], s6 offen {wqflags}'); vm.issue('wq%d' % i)
        if i < 15: A('s_add_u32 s6, s6, 0x10000')
    A('s_barrier')
    srd(SWR, 28, 29, 1024)
    srd(SG, 30, 31, 512 * 3584)
    srd(SU, 32, 33, 512 * 3584)
    srd(SD, 34, 35, 1792 * 1024)
    srd(SO, 24, 25, 4096 * 1024)
    srd(SOUT, 36, 37, 1024)
    vm.wait('x')
    for k in range(4):
        A(f'v_lshlrev_b32 v{Fv[2*k]}, 16, v{X+k}')
        A(f'v_and_b32 v{Fv[2*k+1]}, 0xffff0000, v{X+k}')
    A(f'v_add_f32 v4, v{Fv[0]}, v{Fv[1]}')
    for k in range(2, 8): A(f'v_add_f32 v4, v4, v{Fv[k]}')
    allreduce('v_add_f32', [4], [5], ALL6)
    A('v_mul_f32 v4, 0x3b000000, v4')
    for k in range(8): A(f'v_sub_f32 v{XN[k]}, v{Fv[k]}, v4')
    A(f'v_mul_f32 v6, v{XN[0]}, v{XN[0]}')
    for k in range(1, 8): A(f'v_fmac_f32 v6, v{XN[k]}, v{XN[k]}')
    allreduce('v_add_f32', [6], [5], ALL6)
    A('v_mul_f32 v6, 0x3b000000, v6')
    rne([4, 6], [5])
    A('v_add_f32 v6, 0x3727c5ac, v6')
    rne([6], [5])
    A('v_sqrt_f32 v6, v6')
    rne([6], [5])
    A('v_rcp_f32 v7, v6')
    for k in range(8): A(f'v_sub_f32 v{XN[k]}, v{Fv[k]}, v4')
    rne(XN, [28, 29, 30, 31])
    for k in range(8):
        A(f'v_mul_f32 v{RB+k}, v{XN[k]}, v7')
    for k in range(8):
        A(f'v_fma_f32 v{XN[k]}, -v{RB+k}, v6, v{XN[k]}')
    for k in range(8):
        A(f'v_fma_f32 v{XN[k]}, v{XN[k]}, v7, v{RB+k}')
    rne(XN, [28, 29, 30, 31])
    A('v_lshlrev_b32 v4, 5, v0')
    A(f'ds_write_b128 v4, v[{XN[0]}:{XN[3]}] offset:{L_XN}')
    A(f'ds_write_b128 v4, v[{XN[4]}:{XN[7]}] offset:{L_XN+16}')
    for k in range(8): A(f'v_add_f32 v{Fv[k]}, v{Fv[k]}, v{XN[k]}')
    A(f'ds_write_b128 v4, v[{Fv[0]}:{Fv[3]}] offset:{L_BASE}')
    A(f'ds_write_b128 v4, v[{Fv[4]}:{Fv[7]}] offset:{L_BASE+16}')
    A('v_lshrrev_b32 v5, 3, v0')
    A('v_lshlrev_b32 v5, 2, v5')
    A('s_lshl_b32 s7, s97, 9')
    A('v_add_u32 v5, s7, v5')
    A('s_waitcnt lgkmcnt(0)')
    XR = RB
    for i in range(16):
        A(f'ds_read_b32 v{XR+i}, v5 offset:{L_XN + i*32}')
    ACC = Fv
    for k in range(8): A(f'v_mov_b32 v{ACC[k]}, 0')
    A('s_waitcnt lgkmcnt(0)')
    if not svcst: stamp(1)
    for i in range(16):
        vm.wait('wq%d' % i)
        A(f'v_lshrrev_b32 v28, 16, v{XR+i}')
        for dw in range(4):
            A(f'v_dot2c_f32_bf16 v{ACC[2*dw]}, v{RA+4*i+dw}, v28')
            A(f'v_dot2c_f32_bf16 v{ACC[2*dw+1]}, v{RA+4*i+dw}, v{XR+i}')
    allreduce('v_add_f32', ACC, list(range(RB + 16, RB + 24)), ['ror8', 'x16', 'x32'])
    A('s_waitcnt lgkmcnt(0)')
    A('s_mul_i32 s42, s42, 1664525')
    A('s_add_u32 s42, s42, 1013904223')
    A('s_or_b32 s9, s42, 0x01010101')
    for k in range(4):
        A(f's_bfe_u32 s{TB+k}, s9, {(8 << 16) | (8 * k):#x}')
    PQ = RB + 16
    A('v_and_b32 v5, 8, v0')
    A('v_cmp_ne_u32 vcc, 0, v5')
    for k in range(4):
        A(f'v_cndmask_b32 v{PQ+k}, v{ACC[k]}, v{ACC[4+k]}, vcc')
    for k in range(4):
        A(f'v_and_b32 v{PQ+k}, 0xffffff00, v{PQ+k}')
    for k in range(4):
        A(f'v_or_b32 v{PQ+k}, s{TB+k}, v{PQ+k}')
    A('v_and_b32 v6, 7, v0')
    A('v_lshlrev_b32 v6, 5, v6')
    A('v_lshl_add_u32 v5, v5, 1, v6')
    A('s_lshl_b32 s6, s4, 13')
    A(f's_add_u32 s6, s6, {WS_HQ:#x}')
    A('s_lshl_b32 s7, s97, 11')
    A('s_lshl_b32 s9, s98, 8')
    A('s_add_u32 s7, s7, s9')
    A('s_add_u32 s7, s7, s6')
    A('s_mov_b64 exec, 0xffff')
    A(f'buffer_store_dwordx4 v[{PQ}:{PQ+3}], v5, s[{SW}:{SW+3}], s7 offen sc1'); vm.issue('st')
    A('s_mov_b64 exec, -1')
    if not svcst: stamp(2)
    A('v_lshlrev_b32 v5, 5, v0')
    A('s_add_u32 s7, s6, 4096')
    PL = RA
    def qpoll(track):
        for r in range(4):
            for hf in range(2):
                d = PL + 8 * r + 4 * hf
                A(f'buffer_load_dwordx4 v[{d}:{d+3}], v5, s[{SW}:{SW+3}], {"s6" if r < 2 else "s7"} offen offset:{(r%2)*2048 + hf*16} sc1')
                if track: vm.issue('poll')
    A('s_lshl_b32 s8, s97, 3')
    A('s_add_u32 s8, s8, s4')
    A('s_mul_i32 s8, s8, 7')
    A('s_sub_u32 s9, s98, s4')
    A('s_sub_u32 s9, s9, 1')
    A('s_and_b32 s9, s9, 7')
    A('s_add_u32 s10, s8, s9')
    A('s_lshl_b32 s15, s4, 2')
    A('s_add_u32 s15, s15, s97')
    A('s_bfe_u32 s13, s5, 0x20001')
    A('s_lshl_b32 s14, s15, 2')
    A('s_add_u32 s14, s14, s13')
    A('s_and_b32 s11, s5, 1')
    A('s_cmp_lt_u32 s9, 7')
    A(f's_cselect_b32 s{SG+2}, {512*3584:#x}, 0')
    A(f's_cselect_b32 s{SU+2}, {512*3584:#x}, 0')
    A('s_cmp_lt_u32 s14, 112')
    A(f's_cselect_b32 s{SD+2}, {1792*1024:#x}, 0')
    A('v_lshrrev_b32 v8, 3, v0')
    A('v_mul_u32_u24 v8, 3584, v8')
    A('v_and_b32 v11, 7, v0')
    A('v_lshl_add_u32 v8, v11, 4, v8')
    A('v_and_b32 v9, 31, v0')
    A('v_lshlrev_b32 v9, 4, v9')
    A('v_lshrrev_b32 v11, 5, v0')
    A('v_lshl_add_u32 v10, v11, 13, v9')
    A('v_lshl_add_u32 v9, v11, 10, v9')
    A('s_lshr_b32 s8, s10, 3')
    A('s_and_b32 s9, s10, 7')
    A(f's_mul_i32 s12, s9, {64*3584}')
    A('s_lshl_b32 s13, s8, 7')
    A('s_add_u32 s12, s12, s13')
    A('s_lshl_b32 s20, s14, 14')
    A('s_lshl_b32 s13, s11, 9')
    A('s_add_u32 s20, s20, s13')
    A('s_lshl_b32 s21, s14, 15')
    A('s_add_u32 s21, s21, s13')
    A('s_barrier')
    qpoll(True)
    for i in range(8):
        for mat, srd_, base in (('g', SG, L_WG), ('u', SU, L_WG + 8192)):
            A(f's_mov_b32 m0, {base + i*1024:#x}')
            A('s_nop 0')
            A(f'buffer_load_dwordx4 v8, s[{srd_}:{srd_+3}], s12 offen {wflags} lds'); vm.issue(mat + str(i))
        if i < 7: A(f's_add_u32 s12, s12, {8*3584}')
    A(f'buffer_load_dwordx4 v[{X}:{X+3}], v1, s[{SWR}:{SWR+3}], 0 offen' + (' nt' if xnt else '')); vm.issue('wr')
    for k in range(8):
        A(f's_mov_b32 m0, {L_WD + k*1024 - (k%2)*2048:#x}')
        A('s_nop 0')
        A(f'buffer_load_dwordx4 v9, s[{SD}:{SD+3}], s20 offen offset:{(k%2)*2048} {wflags} lds'); vm.issue('d%d' % k)
        if k % 2 == 1 and k < 7: A('s_add_u32 s20, s20, 4096')
    for k in range(16):
        v = 2 * k
        row = 8 * (v & 3) + (v >> 2)
        A(f's_add_u32 s13, s21, {row*1024}')
        A(f's_mov_b32 m0, {L_WO + k*1024:#x}')
        A('s_nop 0')
        A(f'buffer_load_dwordx4 v10, s[{SO}:{SO+3}], s13 offen {wflags} lds'); vm.issue('o%d' % k)
    vm.wait('poll')
    LAB('L_qcheck')
    for c in range(2):
        A(f'v_mov_b32 v{28+c}, 0')
    for k in range(32):
        A(f'v_msad_u8 v{28+(k%2)}, v{PL+k}, s{TB+(k%4)}, v{28+(k%2)}')
    A('v_or_b32 v4, v28, v29')
    A('v_cmp_ne_u32 vcc, 0, v4')
    A('s_cbranch_vccz L_qok')
    A('s_add_u32 s99, s99, 1')
    A(f's_cmp_gt_u32 s99, {POLL_LIMIT}')
    A('s_cbranch_scc1 L_qok')
    A('s_sleep 1')
    qpoll(False)
    A('s_waitcnt vmcnt(0)')
    A('s_branch L_qcheck')
    LAB('L_qok')
    if stamps: A('s_mov_b32 s100, s99')
    for k in range(32):
        A(f'v_and_b32 v{PL+k}, 0xffffff00, v{PL+k}')
    for k in range(8):
        A(f'v_add_f32 v{PL+k}, v{PL+k}, v{PL+8+k}')
        A(f'v_add_f32 v{PL+16+k}, v{PL+16+k}, v{PL+24+k}')
    for k in range(8):
        A(f'v_add_f32 v{PL+k}, v{PL+k}, v{PL+16+k}')
    for k in range(4):
        A(f'v_cvt_pk_bf16_f32 v{PL+8+k}, v{PL+2*k}, v{PL+2*k+1}')
    A(f'ds_write_b128 v1, v[{PL+8}:{PL+11}] offset:{L_Q}')
    A('s_waitcnt lgkmcnt(0)')
    A('s_barrier')
    A(f's_setprio {svcprio}')
    stamp(3)
    if svc_novmem: novm[0] = True
    if svt: A('v_mov_b32 v160, 0')
    svstamp(0)
    A('s_lshl_b32 s8, s97, 3')
    A('s_add_u32 s8, s8, s4')
    A('s_mul_i32 s8, s8, 7')
    A('s_sub_u32 s9, s98, s4')
    A('s_sub_u32 s9, s9, 1')
    A('s_and_b32 s9, s9, 7')
    A('s_add_u32 s10, s8, s9')
    A('s_lshl_b32 s15, s4, 2')
    A('s_add_u32 s15, s15, s97')
    A('s_bfe_u32 s13, s5, 0x20001')
    A('s_lshl_b32 s14, s15, 2')
    A('s_add_u32 s14, s14, s13')
    A('s_and_b32 s11, s5, 1')
    WD = RB + 32
    A('s_cmp_lt_u32 s9, 7')
    A('s_cbranch_scc0 L_nomoe1')
    A('s_lshr_b32 s8, s10, 3')
    A('s_and_b32 s9, s10, 7')
    A('s_waitcnt vmcnt(25)')
    for i in range(8):
        A(f'ds_read_b128 v[{RA+4*i}:{RA+4*i+3}], v1 offset:{L_WG + i*1024}')
        A(f'ds_read_b128 v[{RA+32+4*i}:{RA+32+4*i+3}], v1 offset:{L_WG + 8192 + i*1024}')
    svstamp(1)
    XR2 = RB
    A('v_lshrrev_b32 v4, 3, v0')
    A('v_lshlrev_b32 v4, 2, v4')
    A('s_lshl_b32 s13, s9, 8')
    A('v_add_u32 v4, s13, v4')
    for i in range(8):
        A(f'ds_read_b32 v{XR2+i}, v4 offset:{L_XN + i*32}')
    AG = list(range(RB + 8, RB + 16)); AU = list(range(RB + 16, RB + 24))
    for k in AG + AU: A(f'v_mov_b32 v{k}, 0')
    A('s_waitcnt lgkmcnt(0)')
    for i in range(8):
        if i == 0: svstamp(2)
        A(f'v_lshrrev_b32 v29, 16, v{XR2+i}')
        for dw in range(4):
            A(f'v_dot2c_f32_bf16 v{AG[2*dw]}, v{RA+4*i+dw}, v29')
            A(f'v_dot2c_f32_bf16 v{AG[2*dw+1]}, v{RA+4*i+dw}, v{XR2+i}')
            A(f'v_dot2c_f32_bf16 v{AU[2*dw]}, v{RA+32+4*i+dw}, v29')
            A(f'v_dot2c_f32_bf16 v{AU[2*dw+1]}, v{RA+32+4*i+dw}, v{XR2+i}')
    svstamp(3)
    allreduce('v_add_f32', AG + AU, list(range(RA, RA + 16)), ['ror8', 'x16', 'x32'])
    PM = RA + 16
    A('v_bfe_u32 v4, v0, 3, 2')
    A('v_cmp_eq_u32 vcc, 1, v4')
    for k in range(4): A(f'v_cndmask_b32 v{PM+k}, v{AG[k]}, v{AG[4+k]}, vcc')
    A('v_cmp_eq_u32 vcc, 2, v4')
    for k in range(4): A(f'v_cndmask_b32 v{PM+k}, v{PM+k}, v{AU[k]}, vcc')
    A('v_cmp_eq_u32 vcc, 3, v4')
    for k in range(4): A(f'v_cndmask_b32 v{PM+k}, v{PM+k}, v{AU[4+k]}, vcc')
    for k in range(4): A(f'v_and_b32 v{PM+k}, 0xffffff00, v{PM+k}')
    for k in range(4): A(f'v_or_b32 v{PM+k}, s{TB+k}, v{PM+k}')
    A('v_bfe_u32 v5, v0, 1, 2')
    A('v_lshlrev_b32 v5, 10, v5')
    A('v_and_b32 v7, 1, v0')
    A('v_lshl_add_u32 v5, v7, 5, v5')
    A('v_lshrrev_b32 v7, 1, v4')
    A('v_lshl_add_u32 v5, v7, 6, v5')
    A('v_and_b32 v7, 1, v4')
    A('v_lshl_add_u32 v5, v7, 4, v5')
    A('s_lshl_b32 s12, s8, 12')
    A('s_lshl_b32 s13, s9, 7')
    A('s_add_u32 s12, s12, s13')
    A(f's_add_u32 s12, s12, {WS_HM:#x}')
    A('s_mov_b64 exec, 0xffffffff')
    A(f'buffer_store_dwordx4 v[{PM}:{PM+3}], v5, s[{SW}:{SW+3}], s12 offen sc1')
    A('s_mov_b64 exec, -1')
    LAB('L_nomoe1')
    svstamp(4)
    if svcst: stamp(1)
    vm.q = []
    OUT = 8
    svstamp(6)
    A('s_waitcnt vmcnt(24)')
    svstamp(7)
    for k in range(4):
        A(f'v_lshlrev_b32 v{Fv[2*k]}, 16, v{X+k}')
        A(f'v_and_b32 v{Fv[2*k+1]}, 0xffff0000, v{X+k}')
    A(f'v_mul_f32 v4, v{Fv[0]}, v{XN[0]}')
    for k in range(1, 8): A(f'v_fmac_f32 v4, v{Fv[k]}, v{XN[k]}')
    allreduce('v_add_f32', [4], [7], ALL6)
    rne([4], [7])
    A('v_mul_f32 v4, s43, v4')
    A('v_sub_f32 v4, 0, v4')
    A('v_exp_f32 v4, v4')
    A('v_add_f32 v4, 1.0, v4')
    A('v_rcp_f32 v4, v4')
    rne([4], [7])
    A('v_mov_b32 v28, v4')
    for c in range(4): A(f'v_mov_b32 v{OUT+c}, 0')
    A('s_cmp_lt_u32 s14, 112')
    A('s_cbranch_scc0 L_nomoe2')
    A('s_lshl_b32 s12, s14, 10')
    A(f's_add_u32 s12, s12, {WS_HM:#x}')
    MP = X
    for _ in range(mdelay // 127): A('s_sleep 127')
    if mdelay % 127: A(f's_sleep {mdelay % 127}')
    LAB('L_mpoll')
    A(f'buffer_load_dwordx4 v[{MP}:{MP+3}], v1, s[{SW}:{SW+3}], s12 offen sc1')
    if svt:
        A('s_cmp_lg_u32 s21, 0')
        A('s_memrealtime s[20:21]')
        A('s_waitcnt lgkmcnt(0)')
        A('v_writelane_b32 v160, s20, 12')
    A('s_waitcnt vmcnt(0)')
    if svt:
        A('v_readlane_b32 s21, v160, 8')
        A('s_cmp_lg_u32 s21, 0')
        A('s_cbranch_scc1 L_sv8')
        svstamp(8)
        LAB('L_sv8')
    A('v_mov_b32 v4, 0')
    for k in range(4):
        A(f'v_msad_u8 v4, v{MP+k}, s{TB+k}, v4')
    A('v_cmp_ne_u32 vcc, 0, v4')
    if svc_novmem: A('s_branch L_mok')
    A('s_cbranch_vccz L_mok')
    A('s_add_u32 s99, s99, 1')
    A(f's_cmp_gt_u32 s99, {POLL_LIMIT}')
    A('s_cbranch_scc1 L_mok')
    A('s_sleep 8')
    A('s_branch L_mpoll')
    LAB('L_mok')
    svstamp(9)
    for k in range(8):
        A(f'ds_read_b128 v[{WD+4*k}:{WD+4*k+3}], v1 offset:{L_WD + k*1024}')
    for k in range(4): A(f'v_and_b32 v{MP+k}, 0xffffff00, v{MP+k}')
    allreduce('v_add_f32', [MP + k for k in range(4)], list(range(RB, RB + 4)), ['ror8', 'x16', 'x32'])
    HG = [MP + k for k in range(4)]; HU = list(range(12, 16)); TE = list(range(16, 20)); TM = [20, 21]
    for k in range(4):
        A(f'v_mov_b32_dpp v{HU[k]}, v{HG[k]} row_ror:4 row_mask:0xf bank_mask:0xf')
    rne(HG, TM); rne(HU, TM)
    for k in range(4): A(f'v_mul_f32 v{TE[k]}, s43, v{HG[k]}')
    for k in range(4): A(f'v_sub_f32 v{TE[k]}, 0, v{TE[k]}')
    for k in range(4): A(f'v_exp_f32 v{TE[k]}, v{TE[k]}')
    for k in range(4): A(f'v_add_f32 v{TE[k]}, 1.0, v{TE[k]}')
    for k in range(4): A(f'v_rcp_f32 v{TE[k]}, v{TE[k]}')
    for k in range(4): A(f'v_mul_f32 v{HG[k]}, v{HG[k]}, v{TE[k]}')
    rne(HG, TM)
    for k in range(4): A(f'v_mul_f32 v{HG[k]}, v{HG[k]}, v{HU[k]}')
    A(f'v_cvt_pk_bf16_f32 v{TM[0]}, v{HG[0]}, v{HG[1]}')
    A(f'v_cvt_pk_bf16_f32 v{TM[1]}, v{HG[2]}, v{HG[3]}')
    for p in range(4):
        A(f'v_readlane_b32 s{60+2*p}, v{TM[0]}, {p}')
        A(f'v_readlane_b32 s{61+2*p}, v{TM[1]}, {p}')
    A('s_waitcnt lgkmcnt(0)')
    for k in range(8):
        for dw in range(2):
            A(f'v_permlane32_swap_b32 v{WD+4*k+dw}, v{WD+4*k+2+dw}')
    for k in range(8):
        for dw in range(2):
            A(f'v_perm_b32 v{RB+4*k+2*dw}, v{WD+4*k+2+dw}, v{WD+4*k+dw}, s44')
            A(f'v_perm_b32 v{RB+4*k+2*dw+1}, v{WD+4*k+2+dw}, v{WD+4*k+dw}, s45')
    for k in range(8):
        for c in range(4):
            A(f'v_dot2c_f32_bf16 v{OUT+c}, s{60+k}, v{RB+4*k+c}')
    for c in range(4): A(f'v_mul_f32 v{OUT+c}, v{OUT+c}, v28')
    LAB('L_nomoe2')
    A('s_waitcnt vmcnt(0)')
    for k in range(16):
        A(f'ds_read_b128 v[{RA+4*k}:{RA+4*k+3}], v1 offset:{L_WO + k*1024}')
    A('s_waitcnt lgkmcnt(0)')
    svstamp(10)
    if svcst: stamp(2)
    for k in range(16):
        for dw in range(2):
            A(f'v_permlane32_swap_b32 v{RA+4*k+dw}, v{RA+4*k+2+dw}')
    for k in range(16):
        for dw in range(2):
            A(f'v_perm_b32 v{RB+4*k+2*dw}, v{RA+4*k+2+dw}, v{RA+4*k+dw}, s44')
            A(f'v_perm_b32 v{RB+4*k+2*dw+1}, v{RA+4*k+2+dw}, v{RA+4*k+dw}, s45')
    A('v_lshrrev_b32 v4, 3, v0')
    A('v_lshlrev_b32 v5, 14, v4')
    A('v_and_b32 v6, 7, v0')
    A('v_lshl_add_u32 v5, v6, 4, v5')
    if mlw:
        A('v_lshlrev_b32 v6, 4, v0')
        A('v_and_b32 v7, 31, v0')
        A('v_lshlrev_b32 v7, 7, v7')
    else:
        A('v_lshlrev_b32 v6, 4, v4')
        A('v_and_b32 v7, 31, v0')
        A('v_lshlrev_b32 v7, 4, v7')
    A('s_lshl_b32 s12, s4, 11')
    A('s_and_b32 s13, s14, 15')
    A('s_lshl_b32 s13, s13, 7')
    A('s_add_u32 s12, s12, s13')
    A(f's_add_u32 s64, s12, {WS_H1O:#x}')
    for i in range(1, 4): A(f's_add_u32 s{64+i}, s64, {i*131072:#x}')
    A(f's_lshl_b32 s15, s15, {12 if mlw else 9}')
    A(f's_add_u32 s15, s15, {WS_H1ML:#x}')
    A('s_lshl_b32 s12, s11, 17')
    A('s_lshl_b32 s13, s14, 10')
    A('s_add_u32 s12, s12, s13')
    A(f's_add_u32 s12, s12, {WS_H2:#x}')
    A('s_lshr_b32 s13, s14, 6')
    A('s_lshl_b32 s13, s13, 17')
    A('s_and_b32 s9, s14, 63')
    A('s_lshl_b32 s9, s9, 4')
    A('s_add_u32 s13, s13, s9')
    A(f's_add_u32 s13, s13, {WS_H2:#x}')
    A('s_add_u32 s10, s13, 0x10000')
    A('v_lshlrev_b32 v2, 10, v0')
    A('s_lshr_b32 s9, s14, 6')
    A('s_lshl_b32 s9, s9, 8')
    A('s_and_b32 s8, s14, 31')
    A('s_lshl_b32 s8, s8, 3')
    A('s_add_u32 s9, s9, s8')
    A('s_bfe_u32 s8, s14, 0x10005')
    A('s_lshl_b32 s8, s8, 2')
    A('s_add_u32 s9, s9, s8')
    A('s_lshl_b32 s14, s9, 1')
    A('s_lshl_b32 s9, s9, 2')
    A('v_mov_b32 v4, s9')
    A(f'ds_read_b128 v[12:15], v4 offset:{L_BASE}')
    A('s_waitcnt lgkmcnt(0)')
    novm[0] = False
    svstamp(11)
    if svt:
        A('s_lshl_b32 s20, s101, 8')
        A(f's_add_u32 s20, s20, {WS_STAMP+0xA0000:#x}')
        A('v_lshlrev_b32 v161, 2, v0')
        A(f'buffer_store_dword v160, v161, s[{SW}:{SW+3}], s20 offen')
    if pre:
        for k in range(6): A(f'v_mov_b32 v{16+k}, 0')
        A('s_not_b32 s9, s42')
        A('v_mov_b32 v22, s9')
        A('v_mov_b32 v23, s9')
        if pre & 1:
            A('s_lshl_b32 s9, s2, 11')
            A(f's_add_u32 s9, s9, {WS_H1O:#x}')
            A(f'buffer_store_dwordx4 v[16:19], v1, s[{SW}:{SW+3}], s9 offen {stf}')
            A(f'buffer_store_dwordx4 v[16:19], v1, s[{SW}:{SW+3}], s9 offen offset:1024 {stf}')
        if pre & 2:
            assert not mlw
            A('s_lshl_b32 s9, s4, 11')
            A('s_lshl_b32 s8, s5, 4')
            A('s_add_u32 s9, s9, s8')
            A(f's_add_u32 s9, s9, {WS_H1ML:#x}')
            A('v_lshlrev_b32 v24, 9, v0')
            A('s_mov_b64 exec, 15')
            A(f'buffer_store_dwordx4 v[20:23], v24, s[{SW}:{SW+3}], s9 offen {stf}')
            A('s_mov_b64 exec, -1')
        if pre & 4:
            A(f'buffer_store_dwordx4 v[16:19], v1, s[{SW}:{SW+3}], s12 offen {stf}')
        A('s_waitcnt vmcnt(0)')
    if warm:
        if warm & 1:
            for i in range(4):
                A(f'buffer_load_dwordx4 v[{RA+16+4*i}:{RA+16+4*i+3}], v6, s[{SW}:{SW+3}], s15 offen offset:{(1024 if mlw else 128)*i} sc1')
                A(f'buffer_load_dwordx4 v[{RA+4*i}:{RA+4*i+3}], v5, s[{SW}:{SW+3}], s{64+i} offen sc1')
        if warm & 2:
            A('s_cmp_lg_u32 s11, 0')
            A('s_cbranch_scc1 L_nowarm2')
            A(f'buffer_load_dwordx4 v[{RA+48}:{RA+51}], v2, s[{SW}:{SW+3}], s13 offen sc1')
            A(f'buffer_load_dwordx4 v[{RA+52}:{RA+55}], v2, s[{SW}:{SW+3}], s10 offen sc1')
            LAB('L_nowarm2')
        A('s_waitcnt vmcnt(0)')
    if direct1 or uni:
        for k in range(32): A(f'v_mov_b32 v{RA+k}, 0')
        for q in (68, 70, 72, 74): A(f's_mov_b64 s[{q}:{q+1}], -1')
    if direct1 or uni:
        A('s_not_b32 s9, s42')
        for i in range(4): A(f'v_mov_b32 v{RA+16+4*i+2}, s9')
    if uni:
        for q in (76, 78, 60, 62, 20): A(f's_mov_b64 s[{q}:{q+1}], -1')
    A('s_setprio 3')
    A('s_barrier')
    stamp(4)
    G1 = RA; GM = RA + 16
    if h1delay and not adel: A(f's_sleep {h1delay}')
    if adel:
        assert dw <= 4
        NTKD_ = 2048 - (512 + 32 * sw * ns) >> (5 - jb)
        NW = 32 * dw
        A('v_mov_b32 v4, 0')
        A(f'ds_read_b128 v[{RA+60}:{RA+63}], v4 offset:{0x5E00}')
        A('s_waitcnt lgkmcnt(0)')
        A(f'v_max3_u32 v4, v{RA+60}, v{RA+61}, v{RA+62}')
        A(f'v_max_u32 v4, v4, v{RA+63}')
        A('v_readfirstlane_b32 s8, v4')
        A(f's_sub_u32 s8, {NTKD_ + NW - 1}, s8')
        A(f's_min_u32 s8, s8, {NW - 1}')
        A(f's_mul_i32 s8, s8, {adel[1]}')
        A('s_lshr_b32 s8, s8, 4')
        A(f's_add_u32 s8, s8, {adel[0]}')
        LAB('L_adel')
        A('s_sleep 1')
        A('s_sub_u32 s8, s8, 1')
        A('s_cbranch_scc0 L_adel')
    if uni:
        MM = [68, 70, 72, 74]; MO = [76, 78, 60, 62]
        TT = list(range(RA + 32, RA + 48))
        LAB('L_h1pipe')
        for i in range(4):
            A(f's_mov_b64 exec, s[{MM[i]}:{MM[i]+1}]')
            A(f'buffer_load_dwordx4 v[{GM+4*i}:{GM+4*i+3}], v6, s[{SW}:{SW+3}], s15 offen offset:{(1024 if mlw else 128)*i} {ldf}')
            A(f's_orn2_b64 s[8:9], s[20:21], s[{MM[i]}:{MM[i]+1}]')
            A(f's_and_b64 exec, s[8:9], s[{MO[i]}:{MO[i]+1}]')
            A(f'buffer_load_dwordx4 v[{G1+4*i}:{G1+4*i+3}], v5, s[{SW}:{SW+3}], s{64+i} offen {ldf}')
        A('s_mov_b64 exec, -1')
        A(f's_waitcnt vmcnt({8*(pipe1-1)})')
        for k in range(4):
            for i in range(4): A(f'v_msad_u8 v{TT[i]}, v{G1+4*i+k}, s{TB+k}, ' + ('0' if k == 0 else f'v{TT[i]}'))
        for i in range(4): A(f'v_cmp_ne_u32_e64 s[{MM[i]}:{MM[i]+1}], s42, v{GM+4*i+2}')
        for i in range(4): A(f'v_cmp_ne_u32_e64 s[{MO[i]}:{MO[i]+1}], 0, v{TT[i]}')
        A('s_mov_b32 s8, 0')
        for i in range(4):
            A(f's_bcnt1_i32_b64 s9, s[{MM[i]}:{MM[i]+1}]')
            A('s_add_u32 s8, s8, s9')
        A(f's_cmp_le_u32 s8, {(32-thresh)*8}')
        A('s_cselect_b64 s[20:21], -1, 0')
        A(f's_or_b64 s[22:23], s[{MO[0]}:{MO[0]+1}], s[{MO[1]}:{MO[1]+1}]')
        A(f's_or_b64 s[24:25], s[{MO[2]}:{MO[2]+1}], s[{MO[3]}:{MO[3]+1}]')
        A('s_or_b64 s[22:23], s[22:23], s[24:25]')
        A('s_or_b32 s9, s22, s23')
        A('s_or_b32 s9, s9, s8')
        A('s_cbranch_scc0 L_h1ok')
        A('s_add_u32 s99, s99, 1')
        A(f's_cmp_gt_u32 s99, {POLL_LIMIT}')
        if p1sleep: A(f's_sleep {p1sleep}')
        A('s_cbranch_scc0 L_h1pipe')
    elif pipe1:
        MS = [68, 70, 72, 74]
        TT = list(range(RA + 32, RA + 48))
        def h1issue():
            for i in range(4):
                A(f's_mov_b64 exec, s[{MS[i]}:{MS[i]+1}]')
                A(f'buffer_load_dwordx4 v[{GM+4*i}:{GM+4*i+3}], v6, s[{SW}:{SW+3}], s15 offen offset:{(1024 if mlw else 128)*i} {ldf}')
                A(f'buffer_load_dwordx4 v[{G1+4*i}:{G1+4*i+3}], v5, s[{SW}:{SW+3}], s{64+i} offen {ldf}')
            A('s_mov_b64 exec, -1')
        def h1check():
            for i in range(4): A(f'v_xor_b32 v{TT[4+i]}, s42, v{GM+4*i+2}')
            for k in range(4):
                for i in range(4): A(f'v_msad_u8 v{TT[i]}, v{G1+4*i+k}, s{TB+k}, ' + ('0' if k == 0 else f'v{TT[i]}'))
            for i in range(4): A(f'v_or_b32 v{TT[i]}, v{TT[i]}, v{TT[4+i]}')
            for i in range(4): A(f'v_cmp_ne_u32_e64 s[{MS[i]}:{MS[i]+1}], 0, v{TT[i]}')
            A(f's_or_b64 s[8:9], s[{MS[0]}:{MS[0]+1}], s[{MS[1]}:{MS[1]+1}]')
            A(f's_or_b64 s[20:21], s[{MS[2]}:{MS[2]+1}], s[{MS[3]}:{MS[3]+1}]')
            A('s_or_b64 s[8:9], s[8:9], s[20:21]')
            A('s_cbranch_scc0 L_h1ok')
        if not direct1:
            for i in range(4): A(f's_mov_b64 s[{MS[i]}:{MS[i]+1}], -1')
            h1issue()
            A('s_waitcnt vmcnt(0)')
            if tst: stamp(1); stamp(2)
            h1check()
            A('s_mov_b32 s8, 0')
            for i in range(4):
                A(f's_bcnt1_i32_b64 s9, s[{MS[i]}:{MS[i]+1}]')
                A('s_add_u32 s8, s8, s9')
            A(f's_cmp_le_u32 s8, {(32-thresh)*8}')
            A('s_cbranch_scc1 L_h1pipe')
            LAB('L_h1quick')
            A(f'buffer_load_dwordx4 v[{TT[8]}:{TT[11]}], v7, s[{SW}:{SW+3}], s15 offen {ldf}')
            A('s_waitcnt vmcnt(0)')
            A(f'v_cmp_eq_u32 vcc, s42, v{TT[10]}')
            A('s_bcnt1_i32_b64 s8, vcc')
            A(f's_cmp_ge_u32 s8, {thresh*2}')
            A('s_cbranch_scc1 L_h1pipe')
            A('s_add_u32 s99, s99, 1')
            A(f's_cmp_gt_u32 s99, {POLL_LIMIT}')
            A('s_cbranch_scc1 L_h1ok')
            A('s_sleep 2')
            A('s_branch L_h1quick')
        LAB('L_h1pipe')
        if tst: stamp(2)
        h1issue()
        A(f's_waitcnt vmcnt({8*(pipe1-1)})')
        h1check()
        A('s_add_u32 s99, s99, 1')
        A(f's_cmp_gt_u32 s99, {POLL_LIMIT}')
        if p1sleep: A(f's_sleep {p1sleep}')
        A('s_cbranch_scc0 L_h1pipe')
    else:
        LAB('L_h1poll')
        for i in range(4):
            A(f'buffer_load_dwordx4 v[{GM+4*i}:{GM+4*i+3}], v6, s[{SW}:{SW+3}], s15 offen offset:{(1024 if mlw else 128)*i} {ldf}')
        for i in range(4):
            A(f'buffer_load_dwordx4 v[{G1+4*i}:{G1+4*i+3}], v5, s[{SW}:{SW+3}], s{64+i} offen {ldf}')
        TT = list(range(RA + 32, RA + 48))
        A('s_waitcnt vmcnt(4)')
        for i in range(4): A(f'v_xor_b32 v{TT[i]}, s42, v{GM+4*i+2}')
        A(f'v_or3_b32 v4, v{TT[0]}, v{TT[1]}, v{TT[2]}')
        A(f'v_or_b32 v4, v4, v{TT[3]}')
        A('v_mov_b32 v29, 0')
        A('s_waitcnt vmcnt(0)')
        for k in range(16):
            A(f'v_msad_u8 v{4 if k % 2 == 0 else 29}, v{G1+k}, s{TB+(k%4)}, v{4 if k % 2 == 0 else 29}')
        A('v_or_b32 v4, v4, v29')
        A('v_cmp_ne_u32 vcc, 0, v4')
        A('s_cbranch_vccz L_h1ok')
        A('s_add_u32 s99, s99, 1')
        A(f's_cmp_gt_u32 s99, {POLL_LIMIT}')
        A('s_cbranch_scc1 L_h1ok')
        A('s_mov_b32 s8, 0')
        for i in range(4):
            A(f'v_cmp_eq_u32 vcc, 0, v{TT[i]}')
            A('s_bcnt1_i32_b64 s9, vcc')
            A('s_add_u32 s8, s8, s9')
        A(f's_cmp_ge_u32 s8, {thresh*8}')
        A('s_cbranch_scc1 L_h1poll')
        LAB('L_h1quick')
        A(f'buffer_load_dwordx4 v[{GM}:{GM+3}], v7, s[{SW}:{SW+3}], s15 offen {ldf}')
        A('s_waitcnt vmcnt(0)')
        A(f'v_cmp_eq_u32 vcc, s42, v{GM+2}')
        A('s_bcnt1_i32_b64 s8, vcc')
        A(f's_cmp_ge_u32 s8, {thresh*2}')
        A('s_cbranch_scc1 L_h1poll')
        A('s_add_u32 s99, s99, 1')
        A(f's_cmp_gt_u32 s99, {POLL_LIMIT}')
        A('s_cbranch_scc1 L_h1ok')
        A('s_sleep 2')
        A('s_branch L_h1quick')
    LAB('L_h1ok')
    stamp(5)
    mI = [GM + 4 * i for i in range(4)]; lI = [GM + 4 * i + 1 for i in range(4)]
    C1 = RA + 48; EI = TT[12:16]
    A(f'v_max3_f32 v4, v{mI[0]}, v{mI[1]}, v{mI[2]}')
    A(f'v_max_f32 v4, v4, v{mI[3]}')
    allreduce('v_max_f32', [4], [29], ['ror8', 'x16', 'x32'])
    for k in range(16): A(f'v_and_b32 v{C1+k}, 0xffffff00, v{G1+k}')
    for i in range(4): A(f'v_sub_f32 v{EI[i]}, v{mI[i]}, v4')
    for i in range(4): A(f'v_mul_f32 v{EI[i]}, s43, v{EI[i]}')
    for i in range(4): A(f'v_exp_f32 v{EI[i]}, v{EI[i]}')
    AC = TT[0:4]; LL = TT[4]
    A(f'v_mul_f32 v{LL}, v{EI[0]}, v{lI[0]}')
    for k in range(4): A(f'v_mul_f32 v{AC[k]}, v{EI[0]}, v{C1+k}')
    for i in range(1, 4):
        A(f'v_fmac_f32 v{LL}, v{EI[i]}, v{lI[i]}')
        for k in range(4): A(f'v_fmac_f32 v{AC[k]}, v{EI[i]}, v{C1+4*i+k}')
    allreduce('v_add_f32', AC + [LL], TT[5:10], ['ror8', 'x16', 'x32'])
    A(f'v_rcp_f32 v4, v{LL}')
    QQ = TT[10:14]
    for k in range(4): A(f'v_mul_f32 v{QQ[k]}, v{AC[k]}, v4')
    for k in range(4): A(f'v_fma_f32 v{AC[k]}, -v{QQ[k]}, v{LL}, v{AC[k]}')
    for k in range(4): A(f'v_fma_f32 v{AC[k]}, v{AC[k]}, v4, v{QQ[k]}')
    A(f'v_cvt_pk_bf16_f32 v{TT[14]}, v{AC[0]}, v{AC[1]}')
    A(f'v_cvt_pk_bf16_f32 v{TT[15]}, v{AC[2]}, v{AC[3]}')
    for p in range(8):
        A(f'v_readlane_b32 s{64+2*p}, v{TT[14]}, {p}')
        A(f'v_readlane_b32 s{65+2*p}, v{TT[15]}, {p}')
    for k in range(16):
        for c in range(4):
            A(f'v_dot2c_f32_bf16 v{OUT+c}, s{64+k}, v{RB+4*k+c}')
    for c in range(4): A(f'v_and_b32 v{OUT+c}, 0xffffff00, v{OUT+c}')
    for c in range(4): A(f'v_or_b32 v{OUT+c}, s{TB+c}, v{OUT+c}')
    A(f'buffer_store_dwordx4 v[{OUT}:{OUT+3}], v1, s[{SW}:{SW+3}], s12 offen {stf}')
    A('s_cmp_lg_u32 s11, 0')
    A('s_cbranch_scc1 L_fin')
    if pipe2:
        A('s_mov_b64 s[68:69], -1')
        A('s_mov_b64 s[70:71], -1')
        for k in range(8): A(f'v_mov_b32 v{RA+48+k}, 0')
    if h2delay: A(f's_sleep {h2delay}')
    H2R = RA + 48; H2C = TT[4:12]
    if pipe2:
        def h2issue():
            A('s_mov_b64 exec, s[68:69]')
            A(f'buffer_load_dwordx4 v[{H2R}:{H2R+3}], v2, s[{SW}:{SW+3}], s13 offen {ldf}')
            A('s_mov_b64 exec, s[70:71]')
            A(f'buffer_load_dwordx4 v[{H2R+4}:{H2R+7}], v2, s[{SW}:{SW+3}], s10 offen {ldf}')
            A('s_mov_b64 exec, -1')
        def h2check():
            A('v_mov_b32 v4, 0')
            A('v_mov_b32 v29, 0')
            for k in range(4):
                A(f'v_msad_u8 v4, v{H2R+k}, s{TB+k}, v4')
                A(f'v_msad_u8 v29, v{H2R+4+k}, s{TB+k}, v29')
            A('v_cmp_ne_u32_e64 s[68:69], 0, v4')
            A('v_cmp_ne_u32_e64 s[70:71], 0, v29')
            A('s_or_b64 s[8:9], s[68:69], s[70:71]')
            A('s_cbranch_scc0 L_h2ok')
        if not direct2:
            h2issue()
            A('s_waitcnt vmcnt(0)')
            h2check()
        LAB('L_h2pipe')
        h2issue()
        A(f's_waitcnt vmcnt({2*(pipe2-1)})')
        h2check()
        A('s_add_u32 s99, s99, 1')
        A(f's_cmp_gt_u32 s99, {POLL_LIMIT}')
        if h2sleep: A(f's_sleep {h2sleep}')
        A('s_cbranch_scc0 L_h2pipe')
    else:
        LAB('L_h2poll')
        A(f'buffer_load_dwordx4 v[{H2R}:{H2R+3}], v2, s[{SW}:{SW+3}], s13 offen {ldf}')
        A(f'buffer_load_dwordx4 v[{H2R+4}:{H2R+7}], v2, s[{SW}:{SW+3}], s10 offen {ldf}')
        A('v_mov_b32 v4, 0')
        A('v_mov_b32 v29, 0')
        A('s_waitcnt vmcnt(0)')
        for k in range(8):
            A(f'v_msad_u8 v{4 if k % 2 == 0 else 29}, v{H2R+k}, s{TB+(k%4)}, v{4 if k % 2 == 0 else 29}')
        A('v_or_b32 v4, v4, v29')
        A('v_cmp_ne_u32 vcc, 0, v4')
        A('s_cbranch_vccz L_h2ok')
        A('s_add_u32 s99, s99, 1')
        A(f's_cmp_gt_u32 s99, {POLL_LIMIT}')
        if h2sleep: A(f's_sleep {h2sleep}')
        A('s_cbranch_scc0 L_h2poll')
    LAB('L_h2ok')
    for k in range(8): A(f'v_and_b32 v{H2C[k]}, 0xffffff00, v{H2R+k}')
    for k in range(4): A(f'v_add_f32 v{G1+k}, v{H2C[k]}, v{H2C[4+k]}')
    allreduce('v_add_f32', [G1 + k for k in range(4)], TT[0:4], ALL6)
    for k in range(4): A(f'v_add_f32 v{G1+k}, v{G1+k}, v{12+k}')
    A(f'v_cvt_pk_bf16_f32 v4, v{G1}, v{G1+1}')
    A(f'v_cvt_pk_bf16_f32 v5, v{G1+2}, v{G1+3}')
    A('v_mov_b32 v6, s14')
    A('s_mov_b64 exec, 1')
    A(f'buffer_store_dwordx2 v[4:5], v6, s[{SOUT}:{SOUT+3}], 0 offen')
    A('s_cmp_lg_u32 s2, 0')
    A('s_cbranch_scc1 L_fin')
    A('v_mov_b32 v6, s42')
    A('v_mov_b32 v7, 0')
    A(f'buffer_store_dword v6, v7, s[{SW}:{SW+3}], 0 offen sc1')
    LAB('L_fin')
    if stamps:
        stamp(6)
        A('s_mov_b64 exec, 1')
        A('s_mov_b32 s98, s100')
        A('s_waitcnt lgkmcnt(0)')
        A('v_mov_b32 v8, s84'); A('v_mov_b32 v9, s85'); A('v_mov_b32 v10, s96'); A('v_mov_b32 v11, s97')
        A('s_lshl_b32 s14, s101, 4')
        A(f's_add_u32 s14, s14, {WS_STAMP:#x}')
        A('v_mov_b32 v7, 0')
        A(f'buffer_store_dwordx4 v[8:11], v7, s[{SW}:{SW+3}], s14 offen')
        A('s_lshl_b32 s14, s101, 6')
        A(f's_add_u32 s14, s14, {WS_STAMP+0x10000:#x}')
        for k in range(0, 7, 2):
            A(f'v_mov_b32 v12, s{84+2*k}'); A(f'v_mov_b32 v13, s{85+2*k}')
            A(f'v_mov_b32 v14, s{86+2*k}'); A(f'v_mov_b32 v15, s{87+2*k}')
            A(f'buffer_store_dwordx4 v[12:15], v7, s[{SW}:{SW+3}], s14 offen offset:{8*k}')
            A('s_nop 1')
    A('s_waitcnt vmcnt(0)')
    LAB('L_end')
    A('s_endpgm')

    body = pad(L)
    check_loops(body)
    out = [HEADER.rstrip('\n')]
    out.append('; Override launch geometry by editing the next line (default: block=256,')
    out.append(f'; @launch grid=(256,1,1) block=(576,1,1) lds={L_SIZE}')
    out.append('.amdgcn_target "amdgcn-amd-amdhsa--gfx950"')
    out.append('.text')
    out.append(f'.globl {NAME}')
    out.append('.p2align 8')
    out.append(f'.type {NAME},@function')
    out += body
    out.append('.section .rodata,"a"')
    out.append('.p2align 6')
    out.append(f'.amdhsa_kernel {NAME}')
    out.append('  .amdhsa_next_free_vgpr 168')
    out.append('  .amdhsa_next_free_sgpr 102')
    out.append('  .amdhsa_accum_offset 168')
    out.append('  .amdhsa_group_segment_fixed_size 0')
    out.append('  .amdhsa_kernarg_size 104')
    out.append('  .amdhsa_user_sgpr_count 2')
    out.append('  .amdhsa_user_sgpr_kernarg_segment_ptr 1')
    out.append('  .amdhsa_system_sgpr_workgroup_id_x 1')
    out.append('.end_amdhsa_kernel')
    return '\n'.join(out) + '\n'

if __name__ == '__main__':
    kw = dict(h2delay=32, h2sleep=2, pp=True, stamps=True, il=True, jb=4)
    M = 1 << 20
    V = {'n0r1': dict(ns=0, rot=M), 'n4r1': dict(ns=4, rot=M), 'n6r1': dict(ns=6, rot=M), 'n8r1': dict(ns=8, rot=M), 'n9r1': dict(ns=9, rot=M), 'n10r1': dict(ns=10, rot=M),
         'n8r2': dict(ns=8, rot=2*M), 'n8r1j3': dict(ns=8, rot=M, jb=3)}
    for k, v in V.items():
        open(f'k9s_{k}.s', 'w').write(gen(**{**kw, **v}))
    print(' '.join(f'work/k9s_{k}.s' for k in V))
    print(', '.join(f'"work/k9s_{k}.s"' for k in V))
```

```python
import gen10
M = 1 << 20
kw = dict(h2delay=24, h2sleep=2, pp=True, stamps=False, mst=False, il=True, jb=5, ns=14, sw=3, dw=3, rot=2*M, srot=0, pipe1=2, p1sleep=4, pipe2=3, thresh=28, h1delay=30)
V = {'kP': dict(pipe2=2, h2sleep=4), 'kQ': dict(thresh=30)}
for k, v in V.items():
    open(f'cdna_kernels/{k}.s', 'w').write(gen10.gen(**{**kw, **v}))
```
